```python
import torch

def _softmax(x, axis=-1):
    return torch.softmax(x, dim=axis)

def _gelu(x):
    return torch.nn.functional.gelu(x, approximate='tanh')

def _silu(x):
    return torch.nn.functional.silu(x)

def _sigmoid(x):
    return torch.sigmoid(x)

def _layernorm(x, axis=-1, eps=1e-05):
    m = x.mean(dim=axis, keepdim=True)
    v = x.var(dim=axis, keepdim=True, unbiased=False)
    return (x - m) / torch.sqrt(v + eps)

def _scatter_add(tgt, idx, src, axis=0):
    return tgt.clone().index_add_(axis, idx, src)

def _segment_sum(src, seg, n):
    out = torch.zeros((n,) + src.shape[1:], dtype=src.dtype)
    return out.index_add_(0, seg, src)

def _pad(x, pw):
    flat = tuple((v for pair in reversed(pw) for v in pair))
    return torch.nn.functional.pad(x, flat)
kernel_name = 'standalone__autoregressive_conv_wavenet__speech'

def setup_inputs():

    _w = lambda a: (lambda t: t.to(torch.bfloat16) if t.is_floating_point() else t)(torch.as_tensor(a))
    B, T, D, K = (2, 4000, 144, 15)
    return {'x': _w((lambda *s: torch.randn(*s, dtype=torch.bfloat16) * 0.1)(B, T, D)), 'w': _w((lambda *s: torch.randn(*s, dtype=torch.bfloat16) * 0.1)(K, D, 2 * D)), 'w_o': _w((lambda *s: torch.randn(*s, dtype=torch.bfloat16) * 0.05)(D, D))}

def reference(x, w, w_o):
    B, T, D = x.shape
    K = w.shape[0]
    dil = 2
    pad = (K - 1) * dil
    xp = _pad(x, ((0, 0), (pad, 0), (0, 0)))
    h = torch.einsum('btc,cd->btd', xp[:, pad:pad + T, :], w[0])
    for i in range(1, K):
        off = pad - i * dil
        h = h + torch.einsum('btc,cd->btd', xp[:, off:off + T, :], w[i])
    f = h[..., :D].clone()
    g = h[..., D:].clone()
    z = torch.tanh(f) * _sigmoid(g)
    return z @ w_o
```

```python
import sys

KNAME = "standalone__autoregressive_conv_wavenet__speech_kernel"

ROWB = 288
WROW = 576
WTAP = 144 * WROW
XB = 4000 * ROWB
NXI = 23
XEND = NXI * 4096
WBASE = XEND
NSLOT = 32
WOBASE = WBASE + 4 * 2048
LDS_BYTES = 163840
INBOX = 18432
STAMP_OFF = 8 << 20
GROUPS = [0, 4, 8, 16, 24, 32, 40, 48, 56, 60, 64]
NSTEP = 68
POLL_MAX = 20000
LOG2E = 1.4426950408889634

HEADER = """; Fused dilated causal conv (15 taps, dilation 2) + tanh*sigmoid gate + output projection.
"""


def f2u(x):
    import struct
    return struct.unpack("<I", struct.pack("<f", x))[0]


class Asm:
    def __init__(self):
        self.l = []

    def __call__(self, s):
        for x in s.split("\n"):
            self.l.append(x)

    def text(self):
        return "\n".join(self.l) + "\n"


def vr(b, n=4):
    return f"v[{b}:{b+n-1}]"


class Q:
    def __init__(self):
        self.ops = []

    def add(self, tag):
        self.ops.append(tag)

    def need(self, tags):
        last = -1
        for i, t in enumerate(self.ops):
            if t in tags:
                last = i
        assert set(tags) <= set(self.ops), (tags, self.ops)
        return len(self.ops) - 1 - last


S_X, S_W, S_WO, S_OUT, S_WS, S_DBG, S_ST = 16, 20, 24, 28, 32, 36, 40
S_WAVE, S_L, S_G, S_S, S_B, S_T0 = 44, 45, 46, 47, 48, 49
S_TAB = 64
S_STAMP = 82


def srd(a, d, lo, hi, nrec):
    a(f"s_mov_b32 s{d}, {lo}")
    a(f"s_and_b32 s{d+1}, {hi}, 0xffff")
    a(f"s_mov_b32 s{d+2}, {nrec}")
    a(f"s_mov_b32 s{d+3}, 0x20000")


def gen(stamps=False, prio=1, poll_delay=0):
    a = Asm()
    nst = [0]

    def stamp():
        if stamps:
            a(f"s_memtime s[{S_STAMP+2*nst[0]}:{S_STAMP+2*nst[0]+1}]")
            nst[0] += 1
            assert nst[0] <= 8

    def dump_stamps(off):
        if not stamps:
            return
        a("s_memrealtime s[100:101]")
        a("s_waitcnt lgkmcnt(0)")
        a(f"s_add_u32 s50, s14, {STAMP_OFF}")
        a("s_addc_u32 s51, s15, 0")
        srd(a, S_ST, "s50", "s51", 1 << 20)
        a(f"s_lshl_b32 s50, s{S_L}, 10")
        a(f"s_lshl_b32 s51, s{S_WAVE}, 7")
        a("s_add_u32 s50, s50, s51")
        a("s_mov_b64 exec, 1")
        a("v_mov_b32 v1, s50")
        for i in range(nst[0]):
            a(f"v_mov_b32 v2, s{S_STAMP+2*i}")
            a(f"buffer_store_dword v2, v1, s[{S_ST}:{S_ST+3}], 0 offen offset:{4*i}")
        a("v_mov_b32 v2, s98")
        a(f"buffer_store_dword v2, v1, s[{S_ST}:{S_ST+3}], 0 offen offset:64")
        a("v_mov_b32 v2, s100")
        a(f"buffer_store_dword v2, v1, s[{S_ST}:{S_ST+3}], 0 offen offset:68")
        a("v_mov_b32 v2, s63")
        a(f"buffer_store_dword v2, v1, s[{S_ST}:{S_ST+3}], 0 offen offset:72")

    a(HEADER.rstrip())
    a(f"; @launch grid=(252,1,1) block=(512,1,1) lds={LDS_BYTES}")
    a('.amdgcn_target "amdgcn-amd-amdhsa--gfx950"')
    a(".text")
    a(f".globl {KNAME}")
    a(".p2align 8")
    a(f".type {KNAME},@function")
    a(f"{KNAME}:")
    if stamps:
        a("s_memrealtime s[98:99]")
        a("s_mov_b32 s63, 0")
    stamp()
    a("s_cmp_ge_u32 s2, 252")
    a("s_cbranch_scc1 L_end")
    a("s_load_dwordx4 s[4:7], s[0:1], 0")
    a("s_load_dwordx4 s[8:11], s[0:1], 16")
    a("s_load_dwordx4 s[12:15], s[0:1], 32")
    a("v_lshrrev_b32 v1, 6, v0")
    a("v_and_b32 v0, 63, v0")
    a(f"v_readfirstlane_b32 s{S_WAVE}, v1")
    a("s_and_b32 s50, s2, 7")
    a("s_lshr_b32 s51, s2, 3")
    a("s_lshl_b32 s52, s50, 5")
    a("s_add_u32 s51, s51, s52")
    a("s_sub_u32 s52, s50, 4")
    a("s_cmp_gt_u32 s50, 4")
    a("s_cselect_b32 s52, s52, 0")
    a(f"s_sub_u32 s{S_L}, s51, s52")
    a(f"s_mul_i32 s{S_G}, s{S_L}, 7282")
    a(f"s_lshr_b32 s{S_G}, s{S_G}, 16")
    a(f"s_mul_i32 s50, s{S_G}, 9")
    a(f"s_sub_u32 s{S_S}, s{S_L}, s50")
    a(f"s_cmp_ge_u32 s{S_G}, 14")
    a(f"s_cselect_b32 s{S_B}, 1, 0")
    a(f"s_cselect_b32 s50, 14, 0")
    a(f"s_sub_u32 s50, s{S_G}, s50")
    a(f"s_mul_i32 s{S_T0}, s50, 288")
    a(f"s_cmp_lt_u32 s{S_WAVE}, 4")
    a("s_cbranch_scc1 L_C")

    S_HW = 53
    a(f"s_sub_u32 s{S_HW}, s{S_WAVE}, 4")
    a(f"v_lshl_add_u32 v1, v0, 2, s{S_HW}")
    a("v_mul_u32_u24 v2, 4370, v1")
    a("v_lshrrev_b32 v2, 16, v2")
    a("v_mul_u32_u24 v3, 15, v2")
    a("v_sub_u32 v3, v1, v3")
    a(f"v_add_u32 v2, s{S_G}, v2")
    a("v_and_b32 v2, 3, v2")
    a(f"v_mul_u32_u24 v3, {WTAP}, v3")
    a(f"v_mul_u32_u24 v2, {32*WROW}, v2")
    a("v_add_u32 v3, v3, v2")
    a("v_subrev_u32 v4, 60, v1")
    a(f"v_mul_u32_u24 v4, {2*WTAP}, v4")
    a(f"v_add_u32 v4, {128*WROW}, v4")
    a("v_cmp_gt_u32 vcc, 60, v1")
    VW0, VW1, VW2, VW3, VXB, VT, VL16, VL8 = 10, 11, 12, 13, 14, 15, 16, 17
    a("v_lshrrev_b32 v5, 2, v0")
    a(f"v_mul_u32_u24 v5, {WROW}, v5")
    a("v_cndmask_b32 v3, v4, v3, vcc")
    a("v_lshrrev_b32 v6, 5, v0")
    a("v_lshlrev_b32 v6, 1, v6")
    a("v_and_b32 v7, 3, v0")
    a("v_xor_b32 v6, v6, v7")
    a("v_lshl_add_u32 v5, v6, 4, v5")
    a(f"s_lshl_b32 s50, s{S_S}, 6")
    a(f"v_add_u32 v{VW0}, s50, v5")
    for n in range(17):
        a(f"v_readlane_b32 s{S_TAB+n}, v3, {n}")
    a(f"v_add_u32 v{VW1}, {16*WROW-1024}, v{VW0}")
    a(f"v_add_u32 v{VW2}, {WTAP-1024}, v{VW0}")
    a(f"s_cmp_eq_u32 s{S_HW}, 3")
    a("s_cselect_b32 s50, 0x80000000, 0")
    a(f"v_or_b32 v{VW3}, s50, v{VW2}")
    a(f"v_lshlrev_b32 v{VL16}, 4, v0")
    a(f"v_lshlrev_b32 v{VL8}, 3, v0")
    a(f"s_mul_i32 s50, s{S_T0}, {ROWB}")
    a(f"s_sub_u32 s50, s50, {30*ROWB}")
    a(f"v_add_u32 v{VXB}, s50, v{VL16}")
    S_XM, S_WB, S_CNT = 54, 55, 56
    a(f"s_mul_i32 s50, s{S_S}, 5")
    a("s_lshr_b32 s50, s50, 1")
    a("s_lshl_b32 s50, s50, 12")
    a(f"s_lshl_b32 s51, s{S_HW}, 10")
    a(f"s_add_u32 s{S_XM}, s50, s51")
    a(f"s_lshl_b32 s51, s{S_HW}, 11")
    a(f"s_add_u32 s{S_WB}, s51, {WBASE}")
    a(f"s_mul_i32 s50, s{S_B}, {XB}")
    a(f"s_mov_b32 m0, s{S_WB}")
    a("s_waitcnt lgkmcnt(0)")
    srd(a, S_W, "s6", "s7", 15 * WTAP)
    vm = Q()

    def wdma(n, setm0=True):
        sig = 4 * n
        if setm0:
            a(f"s_add_u32 m0, s{S_WB}, {(sig % NSLOT) * 2048}")
            a("s_nop 0")
        v1 = VW1 if n < 15 else (VW2 if n == 15 else VW3)
        a(f"buffer_load_dwordx4 v{VW0}, s[{S_W}:{S_W+3}], s{S_TAB+n} offen lds")
        a(f"buffer_load_dwordx4 v{v1}, s[{S_W}:{S_W+3}], s{S_TAB+n} offen offset:1024 lds")
        vm.add(f"W{n}"); vm.add(f"W{n}")

    wdma(0, setm0=False)
    a("s_add_u32 s4, s4, s50")
    a("s_addc_u32 s5, s5, 0")
    srd(a, S_X, "s4", "s5", XB)
    a(f"s_mov_b32 m0, s{S_XM}")
    a(f"s_mov_b32 s{S_CNT}, 0")
    a("L_xloop:")
    a(f"v_add_u32 v{VT}, m0, v{VXB}")
    a(f"s_add_u32 s{S_CNT}, s{S_CNT}, 1")
    a(f"buffer_load_dwordx4 v{VT}, s[{S_X}:{S_X+3}], 0 offen lds")
    a("s_add_u32 s51, m0, 4096")
    a(f"s_cmp_ge_u32 s51, {XEND}")
    a(f"s_cselect_b32 s52, {XEND}, 0")
    a("s_sub_u32 m0, s51, s52")
    a(f"s_cmp_lt_u32 s{S_CNT}, {NXI}")
    a("s_cbranch_scc1 L_xloop")
    for _ in range(NXI):
        vm.add("X")
    for n in range(1, 8):
        wdma(n)
    stamp()
    a(f"s_mul_i32 s51, s{S_G}, {9*INBOX}")
    a("s_add_u32 s60, s14, s51")
    a("s_addc_u32 s61, s15, 0")
    srd(a, S_WS, "s60", "s61", 9 * INBOX)
    srd(a, S_DBG, "s12", "s13", 256)
    srd(a, S_WO, "s8", "s9", 144 * ROWB)
    a("s_add_u32 s10, s10, s50")
    a("s_addc_u32 s11, s11, 0")
    srd(a, S_OUT, "s10", "s11", XB)
    S_IB = 57
    a(f"s_mul_i32 s{S_IB}, s{S_S}, {INBOX}")
    a(f"s_mul_i32 s51, s{S_HW}, 4608")
    a(f"s_add_u32 s58, s{S_IB}, s51")
    a("s_add_u32 s59, s58, 4096")
    for r in range(20, 24):
        a(f"v_mov_b32 v{r}, -1")

    def hbar(sg):
        gi = GROUPS.index(sg)
        end = GROUPS[gi + 1] if gi + 1 < len(GROUPS) else NSTEP
        tags = {f"W{n}" for n in range(sg // 4, end // 4)}
        if sg == 0:
            tags.add("X")
        if sg == 16:
            tags.add("CLR")
        a(f"s_waitcnt vmcnt({vm.need(tags)})")
        a("s_barrier")

    issued = 8
    for sg in GROUPS:
        if sg == 48:
            a(f"s_cmp_lg_u32 s{S_HW}, 0")
            a("s_cbranch_scc1 L_nopoll")
            a(f"s_mov_b32 s{S_CNT}, 0")
            a(f"s_lshl_b32 s51, s{S_G}, 2")
            a("v_mov_b32 v1, s51")
            a("L_rdy:")
            a(f"buffer_load_dword v2, v1, s[{S_DBG}:{S_DBG+3}], 0 offen sc1")
            a(f"s_add_u32 s{S_CNT}, s{S_CNT}, 1")
            a("s_waitcnt vmcnt(0)")
            a("v_readfirstlane_b32 s51, v2")
            a(f"s_cmp_gt_u32 s{S_CNT}, {POLL_MAX}")
            a("s_cbranch_scc1 L_nopoll")
            a("s_cmp_lt_u32 s51, 9")
            a("s_cbranch_scc1 L_rdy")
            a("L_nopoll:")
        hbar(sg)
        if sg == 0:
            stamp()
            for j in range(4):
                a(f"buffer_store_dwordx4 v[20:23], v{VL16}, s[{S_WS}:{S_WS+3}], s58 offen offset:{1024*j} sc1")
                vm.add("CLR")
            a(f"buffer_store_dwordx2 v[20:21], v{VL8}, s[{S_WS}:{S_WS+3}], s59 offen sc1")
            vm.add("CLR")
        if sg == 16:
            a(f"s_cmp_lg_u32 s{S_HW}, 0")
            a("s_cbranch_scc1 L_noatom")
            a(f"s_lshl_b32 s51, s{S_G}, 2")
            a("v_mov_b32 v1, s51")
            a("v_mov_b32 v2, 1")
            a("s_mov_b64 exec, 1")
            a(f"buffer_atomic_add v2, v1, s[{S_DBG}:{S_DBG+3}], 0 offen sc1")
            a("s_mov_b64 exec, -1")
            a("L_noatom:")
        while issued < 17 and issued <= (sg + 27) // 4:
            wdma(issued)
            issued += 1
        if sg == 60:
            a(f"s_lshl_b32 s51, s{S_HW}, 10")
            a(f"v_add_u32 v{VT}, s51, v{VL16}")
            a(f"s_add_u32 m0, s51, {WOBASE}")
            for n in range(11):
                a(f"buffer_load_dwordx4 v{VT}, s[{S_WO}:{S_WO+3}], 0 offen lds")
                vm.add("WO")
                if n < 10:
                    a("s_add_u32 m0, m0, 4096")
                    a(f"v_add_u32 v{VT}, 4096, v{VT}")
    stamp()
    VQ, VR, VA, VA2, VZ16, VZ8, VO, VO2 = 2, 3, 4, 5, 6, 7, 8, 9
    S_TAU, S_AB = 58, 59
    a(f"s_lshr_b32 s{S_TAU}, s{S_HW}, 1")
    a(f"s_and_b32 s{S_AB}, s{S_HW}, 1")
    a(f"v_lshrrev_b32 v{VQ}, 4, v0")
    a(f"v_and_b32 v{VR}, 15, v0")
    a(f"v_lshrrev_b32 v1, 2, v{VR}")
    a(f"v_lshl_add_u32 v1, v{VQ}, 2, v1")
    a(f"v_mul_u32_u24 v1, {ROWB}, v1")
    a(f"v_add_u32 v1, {WOBASE}, v1")
    a(f"v_and_b32 v18, 3, v0")
    a(f"v_lshl_add_u32 v{VA}, v18, 4, v1")
    a(f"v_lshl_add_u32 v{VA2}, v18, 3, v1")
    a(f"s_mul_i32 s51, s{S_TAU}, 5120")
    a(f"v_add_u32 v{VZ16}, s51, v{VL16}")
    a(f"v_add_u32 v{VZ8}, s51, v{VL8}")
    a(f"s_mul_i32 s51, s{S_TAU}, 144")
    a(f"s_add_u32 s51, s51, s{S_T0}")
    a(f"s_add_u32 s51, s51, s{S_S}")
    a(f"v_mul_u32_u24 v1, 9, v{VR}")
    a("v_add_u32 v1, s51, v1")
    a(f"v_mul_u32_u24 v1, {ROWB}, v1")
    a(f"v_lshl_add_u32 v{VO}, v{VQ}, 4, v1")
    a(f"v_lshl_add_u32 v{VO2}, v{VQ}, 3, v1")
    a(f"s_lshl_b32 s51, s{S_TAU}, 10")
    a(f"s_add_u32 s51, s51, s{S_IB}")
    for sp in range(9):
        a(f"s_add_u32 s{64+sp}, s51, {2048*sp}")
    a("s_mov_b32 s62, 0xffff0000")
    a("s_waitcnt vmcnt(0)")
    a("s_barrier")
    stamp()
    a(f"s_cmp_eq_u32 s{S_AB}, 1")
    a("s_cbranch_scc1 L_Hb")

    WOF = 100
    PB = 24
    ZB = 48
    TB = 68
    OB = 76
    save = nst[0]
    for ab in (0, 1):
        nst[0] = save
        sfx = "ab"[ab]
        if ab:
            a("L_Hb:")
        tiles = [(0, 0), (0, 1), (32, 0), (32, 1), (128, None)] if ab == 0 else [(64, 0), (64, 1), (96, 0), (96, 1)]
        for ti, (cb, e) in enumerate(tiles):
            base = VA if e is not None else VA2
            for kap in range(5):
                for rho in range(2 if kap < 4 else 1):
                    off = kap * 9216 + rho * 4608 + cb * 2 + (e or 0) * 8
                    d = WOF + 18 * ti + 4 * kap + 2 * rho
                    a(f"ds_read_b64_tr_b16 {vr(d,2)}, v{base} offset:{off}")
            if ti % 1 == 0:
                a("s_waitcnt lgkmcnt(6)")
        for ti in range(len(tiles)):
            for j in range(4):
                a(f"v_mov_b32 v{OB+4*ti+j}, 0")
        pieces = [0, 1, 4, 5, 6] if ab == 0 else [2, 3, 4, 6, 7, 8]
        preg = {sp: PB + 4 * i for i, sp in enumerate(pieces)}
        a(f"s_mov_b32 s{S_CNT}, 0")
        if poll_delay:
            a(f"s_sleep {poll_delay}")
        a(f"L_poll{sfx}:")
        a(f"s_cmp_eq_u32 s{S_S}, 8")
        a(f"s_cbranch_scc1 L_ld8{sfx}")
        for sp in pieces:
            a(f"buffer_load_dwordx4 {vr(preg[sp])}, v{VL16}, s[{S_WS}:{S_WS+3}], s{64+sp} offen sc1")
        a(f"s_branch L_ldd{sfx}")
        a(f"L_ld8{sfx}:")
        for sp in pieces:
            a(f"buffer_load_dwordx2 {vr(preg[sp],2)}, v{VL8}, s[{S_WS}:{S_WS+3}], s{64+sp} offen sc1")
            a(f"buffer_load_dwordx2 {vr(preg[sp]+2,2)}, v{VL8}, s[{S_WS}:{S_WS+3}], s{64+sp} offen offset:512 sc1")
        a(f"L_ldd{sfx}:")
        a(f"s_add_u32 s{S_CNT}, s{S_CNT}, 1")
        a("s_waitcnt vmcnt(0)")
        chk = [preg[sp] + d for sp in pieces for d in (0, 2)]
        a(f"v_max_u32 v{TB}, v{chk[0]}, v{chk[1]}")
        for i in range(2, len(chk), 2):
            a(f"v_max3_u32 v{TB}, v{TB}, v{chk[i]}, v{chk[i+1]}")
        a(f"v_cmp_eq_u32 vcc, -1, v{TB}")
        a(f"s_cmp_gt_u32 s{S_CNT}, {POLL_MAX}")
        a(f"s_cbranch_scc1 L_got{sfx}")
        a(f"s_cbranch_vccnz L_poll{sfx}")
        a(f"L_got{sfx}:")
        if stamps:
            a(f"s_mov_b32 s63, s{S_CNT}")
        stamp()
        a("s_waitcnt lgkmcnt(0)")

        def blockreg(beta):
            return preg[beta >> 1] + 2 * (beta & 1)

        def product(kap):
            for half in range(2 if kap < 4 else 1):
                zb = 2 * kap + half
                for d in range(2):
                    f = blockreg(zb) + d
                    g = blockreg(zb + 9) + d
                    z = ZB + 4 * kap + 2 * half + d
                    t = TB + 4 * (d & 1)
                    a(f"v_lshlrev_b32 v{t}, 16, v{f}")
                    a(f"v_lshlrev_b32 v{t+1}, 16, v{g}")
                    a(f"v_and_b32 v{t+2}, s62, v{f}")
                    a(f"v_and_b32 v{t+3}, s62, v{g}")
                    a(f"v_mul_f32 v{t}, v{t}, v{t+1}")
                    a(f"v_mul_f32 v{t+2}, v{t+2}, v{t+3}")
                    a(f"v_cvt_pk_bf16_f32 v{z}, v{t}, v{t+2}")

        def fmfma(kap):
            for ti in range(len(tiles)):
                o = vr(OB + 4 * ti)
                if kap < 4:
                    a(f"v_mfma_f32_16x16x32_bf16 {o}, {vr(WOF+18*ti+4*kap)}, {vr(ZB+4*kap)}, {o}")
                else:
                    a(f"v_mfma_f32_16x16x16_bf16 {o}, {vr(WOF+18*ti+16,2)}, {vr(ZB+16,2)}, {o}")

        own = [0, 1] if ab == 0 else [2, 3, 4]
        oth = [2, 3, 4] if ab == 0 else [0, 1]
        for kap in own:
            product(kap)
            if kap < 4:
                a(f"ds_write_b128 v{VZ16}, {vr(ZB+4*kap)} offset:{1024*kap}")
            else:
                a(f"ds_write_b64 v{VZ8}, {vr(ZB+16,2)} offset:4096")
        a("s_waitcnt lgkmcnt(0)")
        a("s_barrier")
        for kap in oth:
            if kap < 4:
                a(f"ds_read_b128 {vr(ZB+4*kap)}, v{VZ16} offset:{1024*kap}")
            else:
                a(f"ds_read_b64 {vr(ZB+16,2)}, v{VZ8} offset:4096")
        seq = [k for k in own if k < 4] + [k for k in oth if k < 4] + [4]
        waited = False
        for kap in seq:
            if kap in oth and not waited:
                a("s_waitcnt lgkmcnt(0)")
                waited = True
            if kap == 4:
                a("s_nop 3")
            fmfma(kap)
        a("s_nop 7")
        for pi in range(2):
            d = PB + 4 * pi
            for e in range(2):
                o = OB + 4 * (2 * pi + e)
                a(f"v_cvt_pk_bf16_f32 v{d+2*e}, v{o}, v{o+1}")
                a(f"v_cvt_pk_bf16_f32 v{d+2*e+1}, v{o+2}, v{o+3}")
            a(f"buffer_store_dwordx4 {vr(d)}, v{VO}, s[{S_OUT}:{S_OUT+3}], 0 offen offset:{tiles[2*pi][0]*2}")
        if ab == 0:
            o = OB + 16
            a(f"v_cvt_pk_bf16_f32 v{PB+8}, v{o}, v{o+1}")
            a(f"v_cvt_pk_bf16_f32 v{PB+9}, v{o+2}, v{o+3}")
            a(f"buffer_store_dwordx2 {vr(PB+8,2)}, v{VO2}, s[{S_OUT}:{S_OUT+3}], 0 offen offset:256")
        stamp()
        if stamps:
            a("s_waitcnt vmcnt(0)")
            stamp()
        dump_stamps(0)
        a("s_endpgm")

    nst[0] = 1
    a("L_C:")
    if prio:
        a(f"s_setprio {prio}")
    S_P, S_PAR = 53, 54
    ACC = 4
    WF = 40
    XW = 64
    XE = 100
    AW, AX, AGW, AGX, AWF = 112, 116, 120, 121, 122
    VC3, VL16c, VL8c = 124, 126, 127
    TT = 128
    a(f"s_lshr_b32 s{S_P}, s{S_WAVE}, 1")
    a(f"s_and_b32 s{S_PAR}, s{S_WAVE}, 1")
    a("v_and_b32 v1, 15, v0")
    a("v_lshrrev_b32 v2, 4, v0")
    a(f"v_mul_u32_u24 v3, {9*ROWB}, v1")
    a(f"s_mul_i32 s50, s{S_P}, {144*ROWB}")
    a(f"s_mul_i32 s51, s{S_PAR}, {ROWB}")
    a("v_add_u32 v3, s50, v3")
    a(f"v_lshl_add_u32 v{TT}, v2, 4, v3")
    for k in range(4):
        a(f"s_add_u32 s52, s{S_G}, {k}")
        a("s_and_b32 s52, s52, 3")
        a("s_lshl_b32 s52, s52, 6")
        a(f"v_add_u32 v{AX+k}, s52, v{TT}")
        a(f"v_add_u32 v{AW+k}, s51, v{AX+k}")
    a(f"v_and_b32 v{TT}, 1, v2")
    a(f"v_lshl_add_u32 v3, v{TT}, 4, v3")
    a(f"v_lshrrev_b32 v{TT+1}, 1, v2")
    a(f"v_mul_u32_u24 v{TT+1}, {2*ROWB}, v{TT+1}")
    a(f"v_sub_u32 v3, v3, v{TT+1}")
    a(f"v_add_u32 v{AGX}, {256+2*ROWB}, v3")
    a(f"v_add_u32 v{AGW}, s51, v{AGX}")
    a(f"v_lshrrev_b32 v3, 2, v1")
    a("v_lshl_add_u32 v3, v2, 3, v3")
    a("v_lshlrev_b32 v3, 6, v3")
    a(f"v_and_b32 v{TT+1}, 3, v0")
    a(f"v_lshl_add_u32 v3, v{TT+1}, 3, v3")
    a(f"v_add_u32 v3, {WBASE}, v3")
    a(f"v_xor_b32 v{TT}, s{S_PAR}, v{TT}")
    a(f"v_lshl_add_u32 v{AWF}, v{TT}, 5, v3")
    a(f"v_xor_b32 v{AWF+1}, 32, v{AWF}")
    for r in range(36):
        a(f"v_mov_b32 v{ACC+r}, 0")
    S_C1, S_C2 = 56, 58
    for phi in range(2):
        a(f"s_xor_b32 s50, s{S_PAR}, {phi}")
        a(f"s_lshl_b32 s51, s{S_S}, 1")
        a("s_add_u32 s50, s50, s51")
        a("s_cmp_lt_u32 s50, 9")
        a(f"s_mov_b32 s51, {f2u(-LOG2E):#x}")
        a(f"s_cselect_b32 s{S_C1+phi}, {f2u(-2*LOG2E):#x}, s51")
        a(f"s_cselect_b32 s{S_C2+phi}, 2.0, 1.0")
        a(f"s_cselect_b32 s50, -1.0, 0")
        a(f"v_mov_b32 v{VC3+phi}, s50")
    a(f"v_lshlrev_b32 v{VL16c}, 4, v0")
    a(f"v_lshlrev_b32 v{VL8c}, 3, v0")
    S_PUB, S_PUBE = 60, 61
    a(f"s_lshl_b32 s50, s{S_S}, 11")
    a(f"s_lshl_b32 s51, s{S_P}, 10")
    a("s_add_u32 s50, s50, s51")
    a(f"s_mul_i32 s51, s{S_PAR}, {INBOX}")
    a(f"s_add_u32 s{S_PUB}, s50, s51")
    a(f"s_lshl_b32 s51, s{S_PAR}, 9")
    a("s_add_u32 s50, s50, s51")
    a(f"s_add_u32 s{S_PUBE}, s50, {8*INBOX}")
    a("s_waitcnt lgkmcnt(0)")
    a(f"s_mul_i32 s51, s{S_G}, {9*INBOX}")
    a("s_add_u32 s50, s14, s51")
    a("s_addc_u32 s51, s15, 0")
    srd(a, S_WS, "s50", "s51", 9 * INBOX)
    stamp()
    if stamps:
        a("s_waitcnt lgkmcnt(0)")

    def step_info(s):
        return (s // 15, s % 15) if s < 60 else (4, s - 60)

    def win_needed(s):
        k, i = step_info(s)
        first = i if k < 4 else 2 * i
        return [(k, first + 3 - jj) for jj in range(4)]

    def wreg(fr):
        return XW + 4 * ((18 * fr[0] + fr[1]) % 9)

    first_use, last_use = {}, {}
    for s in range(NSTEP):
        for fr in win_needed(s):
            first_use.setdefault(fr, s)
            last_use[fr] = s
    load_at = {}
    for fr, fu in first_use.items():
        k, n = fr
        at = fu - 2
        if k >= 1 and n < 3:
            at = 15 * k - 5 + n
        N = 18 * k + n - 9
        if N >= 0:
            prev = (N // 18, N % 18)
            at = max(at, last_use[prev] + 1)
        assert at < fu
        load_at[fr] = at

    def rd_w(s):
        out = []
        for phi in range(2):
            for rho in range(2):
                d = WF + 8 * (s % 3) + 4 * phi + 2 * rho
                out.append((f"ds_read_b64_tr_b16 {vr(d,2)}, v{AWF+phi} offset:{(s % NSLOT)*2048 + 256*rho}", f"w{s}"))
        return out

    def rd_e(s):
        k, i = step_info(s)
        if k < 4:
            return (f"ds_read_b128 {vr(XE+4*(s%3))}, v{AX+k} offset:{(38-2*i)*ROWB}", f"e{s}")
        return (f"ds_read_b128 {vr(XE+4*(s%3))}, v{AGX} offset:{(36-4*i)*ROWB}", f"e{s}")

    def rd_x(fr):
        k, n = fr
        if k < 4:
            return (f"ds_read_b128 {vr(wreg(fr))}, v{AW+k} offset:{(36-2*n)*ROWB}", f"x{fr}")
        return (f"ds_read_b128 {vr(wreg(fr))}, v{AGW} offset:{(34-2*n)*ROWB}", f"x{fr}")

    def reads_in(s):
        out = []
        xs = sorted([fr for fr, at in load_at.items() if at == s], key=lambda fr: first_use[fr])
        urgent = [fr for fr in xs if first_use[fr] == s + 1]
        out += [rd_x(fr) for fr in urgent]
        if s + 2 < NSTEP:
            out += rd_w(s + 2)
            out.append(rd_e(s + 2))
        out += [rd_x(fr) for fr in xs if fr not in urgent]
        return out

    lg = Q()
    a("s_barrier")
    stamp()
    if stamps:
        a("s_waitcnt lgkmcnt(0)")
    pro = rd_w(0) + [rd_x(fr) for fr in sorted(load_at) if load_at[fr] == -2] + [rd_e(0)]
    pro += rd_w(1) + [rd_e(1)] + [rd_x(fr) for fr in sorted(load_at) if load_at[fr] == -1]
    for ins, tag in pro:
        a(ins)
        lg.add(tag)
    for s in range(NSTEP):
        wn = win_needed(s)
        tags = {f"w{s}", f"e{s}"} | {f"x{fr}" for fr in wn}
        n = lg.need(tags)
        assert n <= 15
        a(f"s_waitcnt lgkmcnt({n})")
        rds = reads_in(s)
        mf = []
        for jj in (3, 2, 1, 0):
            for phi in range(2):
                acc = vr(ACC + 8 * jj + 4 * phi)
                mf.append(f"v_mfma_f32_16x16x32_bf16 {acc}, {vr(WF+8*(s%3)+4*phi)}, {vr(wreg(wn[jj]))}, {acc}")
        acc = vr(ACC + 32)
        mf.append(f"v_mfma_f32_16x16x32_bf16 {acc}, {vr(WF+8*(s%3))}, {vr(XE+4*(s%3))}, {acc}")
        bar = (s + 2) in GROUPS
        for i, m in enumerate(mf):
            a(m)
            if i == 0 and bar:
                a("s_barrier")
            if rds:
                ins, tag = rds.pop(0)
                a(ins)
                lg.add(tag)
        assert not rds
    stamp()

    def act(src, phi, dst, t):
        for j in range(4):
            a(f"v_mul_f32 v{t+j}, s{S_C1+phi}, v{src+j}")
        for j in range(4):
            a(f"v_exp_f32 v{t+j}, v{t+j}")
        for j in range(4):
            a(f"v_add_f32 v{t+j}, 1.0, v{t+j}")
        for j in range(4):
            a(f"v_rcp_f32 v{t+j}, v{t+j}")
        for j in range(4):
            a(f"v_fma_f32 v{t+j}, v{t+j}, s{S_C2+phi}, v{VC3+phi}")
        a(f"v_cvt_pk_bf16_f32 v{dst}, v{t}, v{t+1}")
        a(f"v_cvt_pk_bf16_f32 v{dst+1}, v{t+2}, v{t+3}")

    for jj in (3, 2, 1, 0):
        d = WF + 4 * jj
        act(ACC + 8 * jj, 0, d, TT)
        act(ACC + 8 * jj + 4, 1, d + 2, TT + 4)
        a(f"s_cmp_eq_u32 s{S_PAR}, 0")
        a(f"s_cbranch_scc1 L_nosw{jj}")
        a(f"v_swap_b32 v{d}, v{d+2}")
        a(f"v_swap_b32 v{d+1}, v{d+3}")
        a(f"L_nosw{jj}:")
        a(f"s_add_u32 s50, s{S_PUB}, {2*INBOX*jj}")
        a(f"buffer_store_dwordx4 {vr(d)}, v{VL16c}, s[{S_WS}:{S_WS+3}], s50 offen sc1")
    act(ACC + 32, 0, WF + 16, TT)
    a(f"buffer_store_dwordx2 {vr(WF+16,2)}, v{VL8c}, s[{S_WS}:{S_WS+3}], s{S_PUBE} offen sc1")
    stamp()
    if stamps:
        a("s_waitcnt vmcnt(0)")
        stamp()
    dump_stamps(0)
    a("L_end:")
    a("s_endpgm")
    a('.section .rodata,"a"')
    a(".p2align 6")
    a(f".amdhsa_kernel {KNAME}")
    a("  .amdhsa_next_free_vgpr 256")
    a("  .amdhsa_next_free_sgpr 102")
    a("  .amdhsa_accum_offset 256")
    a("  .amdhsa_group_segment_fixed_size 0")
    a("  .amdhsa_kernarg_size 48")
    a("  .amdhsa_user_sgpr_count 2")
    a("  .amdhsa_user_sgpr_kernarg_segment_ptr 1")
    a("  .amdhsa_system_sgpr_workgroup_id_x 1")
    a(".end_amdhsa_kernel")
    return a.text()


if __name__ == "__main__":
    out = sys.argv[1]
    kw = {}
    for x in sys.argv[2:]:
        k, v = x.split("=")
        kw[k] = int(v)
    open(out, "w").write(gen(**kw))
```

```python
import sys

KNAME = "standalone__autoregressive_conv_wavenet__speech_kernel"

ROWB = 288
WROW = 576
WTAP = 144 * WROW
XB = 4000 * ROWB
NXI = 23
XEND = NXI * 4096
WBASE = XEND
NSLOT = 32
WOBASE = WBASE + 4 * 2048
LDS_BYTES = 163840
INBOX = 18432
STAMP_OFF = 8 << 20
GROUPS = [0, 4, 8, 16, 24, 32, 40, 48, 56, 60, 64]
NSTEP = 68
POLL_MAX = 20000
LOG2E = 1.4426950408889634

HEADER = """; Fused dilated causal conv (15 taps, dilation 2) + tanh*sigmoid gate + output projection.
"""


def f2u(x):
    import struct
    return struct.unpack("<I", struct.pack("<f", x))[0]


class Asm:
    def __init__(self):
        self.l = []

    def __call__(self, s):
        for x in s.split("\n"):
            self.l.append(x)

    def text(self):
        return "\n".join(self.l) + "\n"


def vr(b, n=4):
    return f"v[{b}:{b+n-1}]"


class Q:
    def __init__(self):
        self.ops = []

    def add(self, tag):
        self.ops.append(tag)

    def need(self, tags):
        last = -1
        for i, t in enumerate(self.ops):
            if t in tags:
                last = i
        assert set(tags) <= set(self.ops), (tags, self.ops)
        return len(self.ops) - 1 - last


S_X, S_W, S_WO, S_OUT, S_WS, S_DBG, S_ST = 16, 20, 24, 28, 32, 36, 40
S_WAVE, S_L, S_G, S_S, S_B, S_T0 = 44, 45, 46, 47, 48, 49
S_TAB = 64
S_STAMP = 82


def srd(a, d, lo, hi, nrec):
    a(f"s_mov_b32 s{d}, {lo}")
    a(f"s_and_b32 s{d+1}, {hi}, 0xffff")
    a(f"s_mov_b32 s{d+2}, {nrec}")
    a(f"s_mov_b32 s{d+3}, 0x20000")


def gen(stamps=False, prio=1, poll_delay=0, echo_a=-1, echo_b=-1):
    a = Asm()
    nst = [0]
    echo = echo_a >= 0
    if echo:
        stamps = True
    nlab = [0]

    def stamp():
        if stamps:
            a(f"s_memtime s[{S_STAMP+2*nst[0]}:{S_STAMP+2*nst[0]+1}]")
            nst[0] += 1
            assert nst[0] <= 8

    def dump_stamps(off):
        if not stamps:
            return
        if echo:
            if off == 1:
                return
            nlab[0] += 1
            a("s_memtime s[100:101]")
            a("s_waitcnt lgkmcnt(0)")
            a(f"s_sub_u32 s50, s{S_STAMP+2*echo_b}, s{S_STAMP+2*echo_a}")
            a("s_min_u32 s50, s50, 200000")
            a(f"L_echo{nlab[0]}:")
            a("s_memtime s[52:53]")
            a("s_waitcnt lgkmcnt(0)")
            a("s_sub_u32 s51, s52, s100")
            a("s_cmp_lt_u32 s51, s50")
            a(f"s_cbranch_scc1 L_echo{nlab[0]}")
            return
        a("s_memrealtime s[100:101]")
        a("s_waitcnt lgkmcnt(0)")
        a(f"s_add_u32 s50, s14, {STAMP_OFF}")
        a("s_addc_u32 s51, s15, 0")
        srd(a, S_ST, "s50", "s51", 1 << 20)
        a(f"s_lshl_b32 s50, s{S_L}, 10")
        a(f"s_lshl_b32 s51, s{S_WAVE}, 7")
        a("s_add_u32 s50, s50, s51")
        a("s_mov_b64 exec, 1")
        a("v_mov_b32 v1, s50")
        for i in range(nst[0]):
            a(f"v_mov_b32 v2, s{S_STAMP+2*i}")
            a(f"buffer_store_dword v2, v1, s[{S_ST}:{S_ST+3}], 0 offen offset:{4*i}")
        a("v_mov_b32 v2, s98")
        a(f"buffer_store_dword v2, v1, s[{S_ST}:{S_ST+3}], 0 offen offset:64")
        a("v_mov_b32 v2, s100")
        a(f"buffer_store_dword v2, v1, s[{S_ST}:{S_ST+3}], 0 offen offset:68")
        a("v_mov_b32 v2, s63")
        a(f"buffer_store_dword v2, v1, s[{S_ST}:{S_ST+3}], 0 offen offset:72")

    a(HEADER.rstrip())
    a(f"; @launch grid=(252,1,1) block=(512,1,1) lds={LDS_BYTES}")
    a('.amdgcn_target "amdgcn-amd-amdhsa--gfx950"')
    a(".text")
    a(f".globl {KNAME}")
    a(".p2align 8")
    a(f".type {KNAME},@function")
    a(f"{KNAME}:")
    if stamps:
        a("s_memrealtime s[98:99]")
        a("s_mov_b32 s63, 0")
    stamp()
    a("s_cmp_ge_u32 s2, 252")
    a("s_cbranch_scc1 L_end")
    a("s_load_dwordx4 s[4:7], s[0:1], 0")
    a("s_load_dwordx4 s[8:11], s[0:1], 16")
    a("s_load_dwordx4 s[12:15], s[0:1], 32")
    a("v_lshrrev_b32 v1, 6, v0")
    a("v_and_b32 v0, 63, v0")
    a(f"v_readfirstlane_b32 s{S_WAVE}, v1")
    a("s_and_b32 s50, s2, 7")
    a("s_lshr_b32 s51, s2, 3")
    a("s_lshl_b32 s52, s50, 5")
    a("s_add_u32 s51, s51, s52")
    a("s_sub_u32 s52, s50, 4")
    a("s_cmp_gt_u32 s50, 4")
    a("s_cselect_b32 s52, s52, 0")
    a(f"s_sub_u32 s{S_L}, s51, s52")
    a(f"s_mul_i32 s{S_G}, s{S_L}, 7282")
    a(f"s_lshr_b32 s{S_G}, s{S_G}, 16")
    a(f"s_mul_i32 s50, s{S_G}, 9")
    a(f"s_sub_u32 s{S_S}, s{S_L}, s50")
    a(f"s_cmp_ge_u32 s{S_G}, 14")
    a(f"s_cselect_b32 s{S_B}, 1, 0")
    a(f"s_cselect_b32 s50, 14, 0")
    a(f"s_sub_u32 s50, s{S_G}, s50")
    a(f"s_mul_i32 s{S_T0}, s50, 288")
    a(f"s_cmp_lt_u32 s{S_WAVE}, 4")
    a("s_cbranch_scc1 L_C")

    S_HW = 53
    a(f"s_sub_u32 s{S_HW}, s{S_WAVE}, 4")
    a(f"v_lshl_add_u32 v1, v0, 2, s{S_HW}")
    a("v_mul_u32_u24 v2, 4370, v1")
    a("v_lshrrev_b32 v2, 16, v2")
    a("v_mul_u32_u24 v3, 15, v2")
    a("v_sub_u32 v3, v1, v3")
    a(f"v_add_u32 v2, s{S_G}, v2")
    a("v_and_b32 v2, 3, v2")
    a(f"v_mul_u32_u24 v3, {WTAP}, v3")
    a(f"v_mul_u32_u24 v2, {32*WROW}, v2")
    a("v_add_u32 v3, v3, v2")
    a("v_subrev_u32 v4, 60, v1")
    a(f"v_mul_u32_u24 v4, {2*WTAP}, v4")
    a(f"v_add_u32 v4, {128*WROW}, v4")
    a("v_cmp_gt_u32 vcc, 60, v1")
    VW0, VW1, VW2, VW3, VXB, VT, VL16, VL8 = 10, 11, 12, 13, 14, 15, 16, 17
    a("v_lshrrev_b32 v5, 2, v0")
    a(f"v_mul_u32_u24 v5, {WROW}, v5")
    a("v_cndmask_b32 v3, v4, v3, vcc")
    a("v_lshrrev_b32 v6, 5, v0")
    a("v_lshlrev_b32 v6, 1, v6")
    a("v_and_b32 v7, 3, v0")
    a("v_xor_b32 v6, v6, v7")
    a("v_lshl_add_u32 v5, v6, 4, v5")
    a(f"s_lshl_b32 s50, s{S_S}, 6")
    a(f"v_add_u32 v{VW0}, s50, v5")
    for n in range(17):
        a(f"v_readlane_b32 s{S_TAB+n}, v3, {n}")
    a(f"v_add_u32 v{VW1}, {16*WROW-1024}, v{VW0}")
    a(f"v_add_u32 v{VW2}, {WTAP-1024}, v{VW0}")
    a(f"s_cmp_eq_u32 s{S_HW}, 3")
    a("s_cselect_b32 s50, 0x80000000, 0")
    a(f"v_or_b32 v{VW3}, s50, v{VW2}")
    a(f"v_lshlrev_b32 v{VL16}, 4, v0")
    a(f"v_lshlrev_b32 v{VL8}, 3, v0")
    a(f"s_mul_i32 s50, s{S_T0}, {ROWB}")
    a(f"s_sub_u32 s50, s50, {30*ROWB}")
    a(f"v_add_u32 v{VXB}, s50, v{VL16}")
    S_XM, S_WB, S_CNT = 54, 55, 56
    a(f"s_mul_i32 s50, s{S_S}, 5")
    a("s_lshr_b32 s50, s50, 1")
    a("s_lshl_b32 s50, s50, 12")
    a(f"s_lshl_b32 s51, s{S_HW}, 10")
    a(f"s_add_u32 s{S_XM}, s50, s51")
    a(f"s_lshl_b32 s51, s{S_HW}, 11")
    a(f"s_add_u32 s{S_WB}, s51, {WBASE}")
    a(f"s_mul_i32 s50, s{S_B}, {XB}")
    a(f"s_mov_b32 m0, s{S_WB}")
    a("s_waitcnt lgkmcnt(0)")
    srd(a, S_W, "s6", "s7", 15 * WTAP)
    vm = Q()

    def wdma(n, setm0=True):
        sig = 4 * n
        if setm0:
            a(f"s_add_u32 m0, s{S_WB}, {(sig % NSLOT) * 2048}")
            a("s_nop 0")
        v1 = VW1 if n < 15 else (VW2 if n == 15 else VW3)
        a(f"buffer_load_dwordx4 v{VW0}, s[{S_W}:{S_W+3}], s{S_TAB+n} offen lds")
        a(f"buffer_load_dwordx4 v{v1}, s[{S_W}:{S_W+3}], s{S_TAB+n} offen offset:1024 lds")
        vm.add(f"W{n}"); vm.add(f"W{n}")

    wdma(0, setm0=False)
    a("s_add_u32 s4, s4, s50")
    a("s_addc_u32 s5, s5, 0")
    srd(a, S_X, "s4", "s5", XB)
    a(f"s_mov_b32 m0, s{S_XM}")
    a(f"s_mov_b32 s{S_CNT}, 0")
    a("L_xloop:")
    a(f"v_add_u32 v{VT}, m0, v{VXB}")
    a(f"s_add_u32 s{S_CNT}, s{S_CNT}, 1")
    a(f"buffer_load_dwordx4 v{VT}, s[{S_X}:{S_X+3}], 0 offen lds")
    a("s_add_u32 s51, m0, 4096")
    a(f"s_cmp_ge_u32 s51, {XEND}")
    a(f"s_cselect_b32 s52, {XEND}, 0")
    a("s_sub_u32 m0, s51, s52")
    a(f"s_cmp_lt_u32 s{S_CNT}, {NXI}")
    a("s_cbranch_scc1 L_xloop")
    for _ in range(NXI):
        vm.add("X")
    for n in range(1, 8):
        wdma(n)
    stamp()
    a(f"s_mul_i32 s51, s{S_G}, {9*INBOX}")
    a("s_add_u32 s60, s14, s51")
    a("s_addc_u32 s61, s15, 0")
    srd(a, S_WS, "s60", "s61", 9 * INBOX)
    srd(a, S_DBG, "s12", "s13", 256)
    srd(a, S_WO, "s8", "s9", 144 * ROWB)
    a("s_add_u32 s10, s10, s50")
    a("s_addc_u32 s11, s11, 0")
    srd(a, S_OUT, "s10", "s11", XB)
    S_IB = 57
    a(f"s_mul_i32 s{S_IB}, s{S_S}, {INBOX}")
    a(f"s_mul_i32 s51, s{S_HW}, 4608")
    a(f"s_add_u32 s58, s{S_IB}, s51")
    a("s_add_u32 s59, s58, 4096")
    for r in range(20, 24):
        a(f"v_mov_b32 v{r}, -1")

    def hbar(sg):
        gi = GROUPS.index(sg)
        end = GROUPS[gi + 1] if gi + 1 < len(GROUPS) else NSTEP
        tags = {f"W{n}" for n in range(sg // 4, end // 4)}
        if sg == 0:
            tags.add("X")
        if sg == 16:
            tags.add("CLR")
        a(f"s_waitcnt vmcnt({vm.need(tags)})")
        a("s_barrier")

    issued = 8
    for sg in GROUPS:
        if sg == 48:
            a(f"s_cmp_lg_u32 s{S_HW}, 0")
            a("s_cbranch_scc1 L_nopoll")
            a(f"s_mov_b32 s{S_CNT}, 0")
            a(f"s_lshl_b32 s51, s{S_G}, 2")
            a("v_mov_b32 v1, s51")
            a("L_rdy:")
            a(f"buffer_load_dword v2, v1, s[{S_DBG}:{S_DBG+3}], 0 offen sc1")
            a(f"s_add_u32 s{S_CNT}, s{S_CNT}, 1")
            a("s_waitcnt vmcnt(0)")
            a("v_readfirstlane_b32 s51, v2")
            a(f"s_cmp_gt_u32 s{S_CNT}, {POLL_MAX}")
            a("s_cbranch_scc1 L_nopoll")
            a("s_cmp_lt_u32 s51, 9")
            a("s_cbranch_scc1 L_rdy")
            a("L_nopoll:")
        hbar(sg)
        if sg == 0:
            stamp()
            for j in range(4):
                a(f"buffer_store_dwordx4 v[20:23], v{VL16}, s[{S_WS}:{S_WS+3}], s58 offen offset:{1024*j} sc1")
                vm.add("CLR")
            a(f"buffer_store_dwordx2 v[20:21], v{VL8}, s[{S_WS}:{S_WS+3}], s59 offen sc1")
            vm.add("CLR")
        if sg == 16:
            a(f"s_cmp_lg_u32 s{S_HW}, 0")
            a("s_cbranch_scc1 L_noatom")
            a(f"s_lshl_b32 s51, s{S_G}, 2")
            a("v_mov_b32 v1, s51")
            a("v_mov_b32 v2, 1")
            a("s_mov_b64 exec, 1")
            a(f"buffer_atomic_add v2, v1, s[{S_DBG}:{S_DBG+3}], 0 offen sc1")
            a("s_mov_b64 exec, -1")
            a("L_noatom:")
        while issued < 17 and issued <= (sg + 27) // 4:
            wdma(issued)
            issued += 1
        if sg == 60:
            a(f"s_lshl_b32 s51, s{S_HW}, 10")
            a(f"v_add_u32 v{VT}, s51, v{VL16}")
            a(f"s_add_u32 m0, s51, {WOBASE}")
            for n in range(11):
                a(f"buffer_load_dwordx4 v{VT}, s[{S_WO}:{S_WO+3}], 0 offen lds")
                vm.add("WO")
                if n < 10:
                    a("s_add_u32 m0, m0, 4096")
                    a(f"v_add_u32 v{VT}, 4096, v{VT}")
    stamp()
    VQ, VR, VA, VA2, VZ16, VZ8, VO, VO2 = 2, 3, 4, 5, 6, 7, 8, 9
    S_TAU, S_AB = 58, 59
    a(f"s_lshr_b32 s{S_TAU}, s{S_HW}, 1")
    a(f"s_and_b32 s{S_AB}, s{S_HW}, 1")
    a(f"v_lshrrev_b32 v{VQ}, 4, v0")
    a(f"v_and_b32 v{VR}, 15, v0")
    a(f"v_lshrrev_b32 v1, 2, v{VR}")
    a(f"v_lshl_add_u32 v1, v{VQ}, 2, v1")
    a(f"v_mul_u32_u24 v1, {ROWB}, v1")
    a(f"v_add_u32 v1, {WOBASE}, v1")
    a(f"v_and_b32 v18, 3, v0")
    a(f"v_lshl_add_u32 v{VA}, v18, 4, v1")
    a(f"v_lshl_add_u32 v{VA2}, v18, 3, v1")
    a(f"s_mul_i32 s51, s{S_TAU}, 5120")
    a(f"v_add_u32 v{VZ16}, s51, v{VL16}")
    a(f"v_add_u32 v{VZ8}, s51, v{VL8}")
    a(f"s_mul_i32 s51, s{S_TAU}, 144")
    a(f"s_add_u32 s51, s51, s{S_T0}")
    a(f"s_add_u32 s51, s51, s{S_S}")
    a(f"v_mul_u32_u24 v1, 9, v{VR}")
    a("v_add_u32 v1, s51, v1")
    a(f"v_mul_u32_u24 v1, {ROWB}, v1")
    a(f"v_lshl_add_u32 v{VO}, v{VQ}, 4, v1")
    a(f"v_lshl_add_u32 v{VO2}, v{VQ}, 3, v1")
    a(f"s_lshl_b32 s51, s{S_TAU}, 10")
    a(f"s_add_u32 s51, s51, s{S_IB}")
    for sp in range(9):
        a(f"s_add_u32 s{64+sp}, s51, {2048*sp}")
    a("s_mov_b32 s62, 0xffff0000")
    a("s_waitcnt vmcnt(0)")
    a("s_barrier")
    stamp()
    a(f"s_cmp_eq_u32 s{S_AB}, 1")
    a("s_cbranch_scc1 L_Hb")

    WOF = 100
    PB = 24
    ZB = 48
    TB = 68
    OB = 76
    save = nst[0]
    for ab in (0, 1):
        nst[0] = save
        sfx = "ab"[ab]
        if ab:
            a("L_Hb:")
        tiles = [(0, 0), (0, 1), (32, 0), (32, 1), (128, None)] if ab == 0 else [(64, 0), (64, 1), (96, 0), (96, 1)]
        for ti, (cb, e) in enumerate(tiles):
            base = VA if e is not None else VA2
            for kap in range(5):
                for rho in range(2 if kap < 4 else 1):
                    off = kap * 9216 + rho * 4608 + cb * 2 + (e or 0) * 8
                    d = WOF + 18 * ti + 4 * kap + 2 * rho
                    a(f"ds_read_b64_tr_b16 {vr(d,2)}, v{base} offset:{off}")
            if ti % 1 == 0:
                a("s_waitcnt lgkmcnt(6)")
        for ti in range(len(tiles)):
            for j in range(4):
                a(f"v_mov_b32 v{OB+4*ti+j}, 0")
        pieces = [0, 1, 4, 5, 6] if ab == 0 else [2, 3, 4, 6, 7, 8]
        preg = {sp: PB + 4 * i for i, sp in enumerate(pieces)}
        a(f"s_mov_b32 s{S_CNT}, 0")
        if poll_delay:
            a(f"s_sleep {poll_delay}")
        a(f"L_poll{sfx}:")
        a(f"s_cmp_eq_u32 s{S_S}, 8")
        a(f"s_cbranch_scc1 L_ld8{sfx}")
        for sp in pieces:
            a(f"buffer_load_dwordx4 {vr(preg[sp])}, v{VL16}, s[{S_WS}:{S_WS+3}], s{64+sp} offen sc1")
        a(f"s_branch L_ldd{sfx}")
        a(f"L_ld8{sfx}:")
        for sp in pieces:
            a(f"buffer_load_dwordx2 {vr(preg[sp],2)}, v{VL8}, s[{S_WS}:{S_WS+3}], s{64+sp} offen sc1")
            a(f"buffer_load_dwordx2 {vr(preg[sp]+2,2)}, v{VL8}, s[{S_WS}:{S_WS+3}], s{64+sp} offen offset:512 sc1")
        a(f"L_ldd{sfx}:")
        a(f"s_add_u32 s{S_CNT}, s{S_CNT}, 1")
        a("s_waitcnt vmcnt(0)")
        chk = [preg[sp] + d for sp in pieces for d in (0, 2)]
        a(f"v_max_u32 v{TB}, v{chk[0]}, v{chk[1]}")
        for i in range(2, len(chk), 2):
            a(f"v_max3_u32 v{TB}, v{TB}, v{chk[i]}, v{chk[i+1]}")
        a(f"v_cmp_eq_u32 vcc, -1, v{TB}")
        a(f"s_cmp_gt_u32 s{S_CNT}, {POLL_MAX}")
        a(f"s_cbranch_scc1 L_got{sfx}")
        a(f"s_cbranch_vccnz L_poll{sfx}")
        a(f"L_got{sfx}:")
        if stamps:
            a(f"s_mov_b32 s63, s{S_CNT}")
        stamp()
        a("s_waitcnt lgkmcnt(0)")

        def blockreg(beta):
            return preg[beta >> 1] + 2 * (beta & 1)

        def product(kap):
            for half in range(2 if kap < 4 else 1):
                zb = 2 * kap + half
                for d in range(2):
                    f = blockreg(zb) + d
                    g = blockreg(zb + 9) + d
                    z = ZB + 4 * kap + 2 * half + d
                    t = TB + 4 * (d & 1)
                    a(f"v_lshlrev_b32 v{t}, 16, v{f}")
                    a(f"v_lshlrev_b32 v{t+1}, 16, v{g}")
                    a(f"v_and_b32 v{t+2}, s62, v{f}")
                    a(f"v_and_b32 v{t+3}, s62, v{g}")
                    a(f"v_mul_f32 v{t}, v{t}, v{t+1}")
                    a(f"v_mul_f32 v{t+2}, v{t+2}, v{t+3}")
                    a(f"v_cvt_pk_bf16_f32 v{z}, v{t}, v{t+2}")

        def fmfma(kap):
            for ti in range(len(tiles)):
                o = vr(OB + 4 * ti)
                if kap < 4:
                    a(f"v_mfma_f32_16x16x32_bf16 {o}, {vr(WOF+18*ti+4*kap)}, {vr(ZB+4*kap)}, {o}")
                else:
                    a(f"v_mfma_f32_16x16x16_bf16 {o}, {vr(WOF+18*ti+16,2)}, {vr(ZB+16,2)}, {o}")

        own = [0, 1] if ab == 0 else [2, 3, 4]
        oth = [2, 3, 4] if ab == 0 else [0, 1]
        for kap in own:
            product(kap)
            if kap < 4:
                a(f"ds_write_b128 v{VZ16}, {vr(ZB+4*kap)} offset:{1024*kap}")
            else:
                a(f"ds_write_b64 v{VZ8}, {vr(ZB+16,2)} offset:4096")
        a("s_waitcnt lgkmcnt(0)")
        a("s_barrier")
        for kap in oth:
            if kap < 4:
                a(f"ds_read_b128 {vr(ZB+4*kap)}, v{VZ16} offset:{1024*kap}")
            else:
                a(f"ds_read_b64 {vr(ZB+16,2)}, v{VZ8} offset:4096")
        seq = [k for k in own if k < 4] + [k for k in oth if k < 4] + [4]
        waited = False
        for kap in seq:
            if kap in oth and not waited:
                a("s_waitcnt lgkmcnt(0)")
                waited = True
            if kap == 4:
                a("s_nop 3")
            fmfma(kap)
        a("s_nop 7")
        for pi in range(2):
            d = PB + 4 * pi
            for e in range(2):
                o = OB + 4 * (2 * pi + e)
                a(f"v_cvt_pk_bf16_f32 v{d+2*e}, v{o}, v{o+1}")
                a(f"v_cvt_pk_bf16_f32 v{d+2*e+1}, v{o+2}, v{o+3}")
            a(f"buffer_store_dwordx4 {vr(d)}, v{VO}, s[{S_OUT}:{S_OUT+3}], 0 offen offset:{tiles[2*pi][0]*2}")
        if ab == 0:
            o = OB + 16
            a(f"v_cvt_pk_bf16_f32 v{PB+8}, v{o}, v{o+1}")
            a(f"v_cvt_pk_bf16_f32 v{PB+9}, v{o+2}, v{o+3}")
            a(f"buffer_store_dwordx2 {vr(PB+8,2)}, v{VO2}, s[{S_OUT}:{S_OUT+3}], 0 offen offset:256")
        stamp()
        if stamps:
            a("s_waitcnt vmcnt(0)")
            stamp()
        dump_stamps(0)
        a("s_endpgm")

    nst[0] = 1
    a("L_C:")
    if prio:
        a(f"s_setprio {prio}")
    S_P, S_PAR = 53, 54
    ACC = 4
    WF = 40
    XW = 64
    XE = 100
    AW, AX, AGW, AGX, AWF = 112, 116, 120, 121, 122
    VC3, VL16c, VL8c = 124, 126, 127
    TT = 128
    a(f"s_lshr_b32 s{S_P}, s{S_WAVE}, 1")
    a(f"s_and_b32 s{S_PAR}, s{S_WAVE}, 1")
    a("v_and_b32 v1, 15, v0")
    a("v_lshrrev_b32 v2, 4, v0")
    a(f"v_mul_u32_u24 v3, {9*ROWB}, v1")
    a(f"s_mul_i32 s50, s{S_P}, {144*ROWB}")
    a(f"s_mul_i32 s51, s{S_PAR}, {ROWB}")
    a("v_add_u32 v3, s50, v3")
    a(f"v_lshl_add_u32 v{TT}, v2, 4, v3")
    for k in range(4):
        a(f"s_add_u32 s52, s{S_G}, {k}")
        a("s_and_b32 s52, s52, 3")
        a("s_lshl_b32 s52, s52, 6")
        a(f"v_add_u32 v{AX+k}, s52, v{TT}")
        a(f"v_add_u32 v{AW+k}, s51, v{AX+k}")
    a(f"v_and_b32 v{TT}, 1, v2")
    a(f"v_lshl_add_u32 v3, v{TT}, 4, v3")
    a(f"v_lshrrev_b32 v{TT+1}, 1, v2")
    a(f"v_mul_u32_u24 v{TT+1}, {2*ROWB}, v{TT+1}")
    a(f"v_sub_u32 v3, v3, v{TT+1}")
    a(f"v_add_u32 v{AGX}, {256+2*ROWB}, v3")
    a(f"v_add_u32 v{AGW}, s51, v{AGX}")
    a(f"v_lshrrev_b32 v3, 2, v1")
    a("v_lshl_add_u32 v3, v2, 3, v3")
    a("v_lshlrev_b32 v3, 6, v3")
    a(f"v_and_b32 v{TT+1}, 3, v0")
    a(f"v_lshl_add_u32 v3, v{TT+1}, 3, v3")
    a(f"v_add_u32 v3, {WBASE}, v3")
    a(f"v_xor_b32 v{TT}, s{S_PAR}, v{TT}")
    a(f"v_lshl_add_u32 v{AWF}, v{TT}, 5, v3")
    a(f"v_xor_b32 v{AWF+1}, 32, v{AWF}")
    for r in range(36):
        a(f"v_mov_b32 v{ACC+r}, 0")
    S_C1, S_C2 = 56, 58
    for phi in range(2):
        a(f"s_xor_b32 s50, s{S_PAR}, {phi}")
        a(f"s_lshl_b32 s51, s{S_S}, 1")
        a("s_add_u32 s50, s50, s51")
        a("s_cmp_lt_u32 s50, 9")
        a(f"s_mov_b32 s51, {f2u(-LOG2E):#x}")
        a(f"s_cselect_b32 s{S_C1+phi}, {f2u(-2*LOG2E):#x}, s51")
        a(f"s_cselect_b32 s{S_C2+phi}, 2.0, 1.0")
        a(f"s_cselect_b32 s50, -1.0, 0")
        a(f"v_mov_b32 v{VC3+phi}, s50")
    a(f"v_lshlrev_b32 v{VL16c}, 4, v0")
    a(f"v_lshlrev_b32 v{VL8c}, 3, v0")
    S_PUB, S_PUBE = 60, 61
    a(f"s_lshl_b32 s50, s{S_S}, 11")
    a(f"s_lshl_b32 s51, s{S_P}, 10")
    a("s_add_u32 s50, s50, s51")
    a(f"s_mul_i32 s51, s{S_PAR}, {INBOX}")
    a(f"s_add_u32 s{S_PUB}, s50, s51")
    a(f"s_lshl_b32 s51, s{S_PAR}, 9")
    a("s_add_u32 s50, s50, s51")
    a(f"s_add_u32 s{S_PUBE}, s50, {8*INBOX}")
    a("s_waitcnt lgkmcnt(0)")
    a(f"s_mul_i32 s51, s{S_G}, {9*INBOX}")
    a("s_add_u32 s50, s14, s51")
    a("s_addc_u32 s51, s15, 0")
    srd(a, S_WS, "s50", "s51", 9 * INBOX)
    stamp()
    if stamps:
        a("s_waitcnt lgkmcnt(0)")

    def step_info(s):
        return (s // 15, s % 15) if s < 60 else (4, s - 60)

    def win_needed(s):
        k, i = step_info(s)
        first = i if k < 4 else 2 * i
        return [(k, first + 3 - jj) for jj in range(4)]

    def wreg(fr):
        return XW + 4 * ((18 * fr[0] + fr[1]) % 9)

    first_use, last_use = {}, {}
    for s in range(NSTEP):
        for fr in win_needed(s):
            first_use.setdefault(fr, s)
            last_use[fr] = s
    load_at = {}
    for fr, fu in first_use.items():
        k, n = fr
        at = fu - 2
        if k >= 1 and n < 3:
            at = 15 * k - 5 + n
        N = 18 * k + n - 9
        if N >= 0:
            prev = (N // 18, N % 18)
            at = max(at, last_use[prev] + 1)
        assert at < fu
        load_at[fr] = at

    def rd_w(s):
        out = []
        for phi in range(2):
            for rho in range(2):
                d = WF + 8 * (s % 3) + 4 * phi + 2 * rho
                out.append((f"ds_read_b64_tr_b16 {vr(d,2)}, v{AWF+phi} offset:{(s % NSLOT)*2048 + 256*rho}", f"w{s}"))
        return out

    def rd_e(s):
        k, i = step_info(s)
        if k < 4:
            return (f"ds_read_b128 {vr(XE+4*(s%3))}, v{AX+k} offset:{(38-2*i)*ROWB}", f"e{s}")
        return (f"ds_read_b128 {vr(XE+4*(s%3))}, v{AGX} offset:{(36-4*i)*ROWB}", f"e{s}")

    def rd_x(fr):
        k, n = fr
        if k < 4:
            return (f"ds_read_b128 {vr(wreg(fr))}, v{AW+k} offset:{(36-2*n)*ROWB}", f"x{fr}")
        return (f"ds_read_b128 {vr(wreg(fr))}, v{AGW} offset:{(34-2*n)*ROWB}", f"x{fr}")

    def reads_in(s):
        out = []
        xs = sorted([fr for fr, at in load_at.items() if at == s], key=lambda fr: first_use[fr])
        urgent = [fr for fr in xs if first_use[fr] == s + 1]
        out += [rd_x(fr) for fr in urgent]
        if s + 2 < NSTEP:
            out += rd_w(s + 2)
            out.append(rd_e(s + 2))
        out += [rd_x(fr) for fr in xs if fr not in urgent]
        return out

    lg = Q()
    a("s_barrier")
    stamp()
    if stamps:
        a("s_waitcnt lgkmcnt(0)")
    pro = rd_w(0) + [rd_x(fr) for fr in sorted(load_at) if load_at[fr] == -2] + [rd_e(0)]
    pro += rd_w(1) + [rd_e(1)] + [rd_x(fr) for fr in sorted(load_at) if load_at[fr] == -1]
    for ins, tag in pro:
        a(ins)
        lg.add(tag)
    for s in range(NSTEP):
        wn = win_needed(s)
        tags = {f"w{s}", f"e{s}"} | {f"x{fr}" for fr in wn}
        n = lg.need(tags)
        assert n <= 15
        a(f"s_waitcnt lgkmcnt({n})")
        rds = reads_in(s)
        mf = []
        for jj in (3, 2, 1, 0):
            for phi in range(2):
                acc = vr(ACC + 8 * jj + 4 * phi)
                mf.append(f"v_mfma_f32_16x16x32_bf16 {acc}, {vr(WF+8*(s%3)+4*phi)}, {vr(wreg(wn[jj]))}, {acc}")
        acc = vr(ACC + 32)
        mf.append(f"v_mfma_f32_16x16x32_bf16 {acc}, {vr(WF+8*(s%3))}, {vr(XE+4*(s%3))}, {acc}")
        bar = (s + 2) in GROUPS
        for i, m in enumerate(mf):
            a(m)
            if i == 0 and bar:
                a("s_barrier")
            if rds:
                ins, tag = rds.pop(0)
                a(ins)
                lg.add(tag)
        assert not rds
    stamp()

    def act(src, phi, dst, t):
        for j in range(4):
            a(f"v_mul_f32 v{t+j}, s{S_C1+phi}, v{src+j}")
        for j in range(4):
            a(f"v_exp_f32 v{t+j}, v{t+j}")
        for j in range(4):
            a(f"v_add_f32 v{t+j}, 1.0, v{t+j}")
        for j in range(4):
            a(f"v_rcp_f32 v{t+j}, v{t+j}")
        for j in range(4):
            a(f"v_fma_f32 v{t+j}, v{t+j}, s{S_C2+phi}, v{VC3+phi}")
        a(f"v_cvt_pk_bf16_f32 v{dst}, v{t}, v{t+1}")
        a(f"v_cvt_pk_bf16_f32 v{dst+1}, v{t+2}, v{t+3}")

    for jj in (3, 2, 1, 0):
        d = WF + 4 * jj
        act(ACC + 8 * jj, 0, d, TT)
        act(ACC + 8 * jj + 4, 1, d + 2, TT + 4)
        a(f"s_cmp_eq_u32 s{S_PAR}, 0")
        a(f"s_cbranch_scc1 L_nosw{jj}")
        a(f"v_swap_b32 v{d}, v{d+2}")
        a(f"v_swap_b32 v{d+1}, v{d+3}")
        a(f"L_nosw{jj}:")
        a(f"s_add_u32 s50, s{S_PUB}, {2*INBOX*jj}")
        a(f"buffer_store_dwordx4 {vr(d)}, v{VL16c}, s[{S_WS}:{S_WS+3}], s50 offen sc1")
    act(ACC + 32, 0, WF + 16, TT)
    a(f"buffer_store_dwordx2 {vr(WF+16,2)}, v{VL8c}, s[{S_WS}:{S_WS+3}], s{S_PUBE} offen sc1")
    stamp()
    if stamps:
        a("s_waitcnt vmcnt(0)")
        stamp()
    dump_stamps(1)
    a("L_end:")
    a("s_endpgm")
    a('.section .rodata,"a"')
    a(".p2align 6")
    a(f".amdhsa_kernel {KNAME}")
    a("  .amdhsa_next_free_vgpr 256")
    a("  .amdhsa_next_free_sgpr 102")
    a("  .amdhsa_accum_offset 256")
    a("  .amdhsa_group_segment_fixed_size 0")
    a("  .amdhsa_kernarg_size 48")
    a("  .amdhsa_user_sgpr_count 2")
    a("  .amdhsa_user_sgpr_kernarg_segment_ptr 1")
    a("  .amdhsa_system_sgpr_workgroup_id_x 1")
    a(".end_amdhsa_kernel")
    return a.text()


if __name__ == "__main__":
    out = sys.argv[1]
    kw = {}
    for x in sys.argv[2:]:
        k, v = x.split("=")
        kw[k] = int(v)
    open(out, "w").write(gen(**kw))
```

```python
import sys

KNAME = "standalone__autoregressive_conv_wavenet__speech_kernel"

ROWB = 288
WROW = 576
WTAP = 144 * WROW
XB = 4000 * ROWB
NXI = 23
XEND = NXI * 4096
WBASE = XEND
NSLOT = 32
WOBASE = WBASE + 4 * 2048
LDS_BYTES = 163840
INBOX = 18432
STAMP_OFF = 8 << 20
GROUPS = [0, 4, 8, 16, 24, 32, 40, 48, 56, 60, 64]
NSTEP = 68
POLL_MAX = 20000
LOG2E = 1.4426950408889634

HEADER = """; Fused dilated causal conv (15 taps, dilation 2) + tanh*sigmoid gate + output projection.
"""


def f2u(x):
    import struct
    return struct.unpack("<I", struct.pack("<f", x))[0]


class Asm:
    def __init__(self):
        self.l = []

    def __call__(self, s):
        for x in s.split("\n"):
            self.l.append(x)

    def text(self):
        return "\n".join(self.l) + "\n"


def vr(b, n=4):
    return f"v[{b}:{b+n-1}]"


class Q:
    def __init__(self):
        self.ops = []

    def add(self, tag):
        self.ops.append(tag)

    def need(self, tags):
        last = -1
        for i, t in enumerate(self.ops):
            if t in tags:
                last = i
        assert set(tags) <= set(self.ops), (tags, self.ops)
        return len(self.ops) - 1 - last


S_X, S_W, S_WO, S_OUT, S_WS, S_DBG, S_ST = 16, 20, 24, 28, 32, 36, 40
S_WAVE, S_L, S_G, S_S, S_B, S_T0 = 44, 45, 46, 47, 48, 49
S_TAB = 64
S_STAMP = 82


def srd(a, d, lo, hi, nrec):
    a(f"s_mov_b32 s{d}, {lo}")
    a(f"s_and_b32 s{d+1}, {hi}, 0xffff")
    a(f"s_mov_b32 s{d+2}, {nrec}")
    a(f"s_mov_b32 s{d+3}, 0x20000")


def gen(stamps=False, prio=1, poll_delay=0, echo_a=-1, echo_b=-1, rt=0, ost=0, rot=1, align=0):
    a = Asm()
    nst = [0]
    echo = echo_a >= 0
    if echo:
        stamps = True
    nlab = [0]
    OST = ['', ' sc1', ' sc0 sc1', ' nt', ' sc1 nt'][ost]

    def stamp():
        if stamps:
            a(f"{'s_memrealtime' if rt else 's_memtime'} s[{S_STAMP+2*nst[0]}:{S_STAMP+2*nst[0]+1}]")
            nst[0] += 1
            assert nst[0] <= 8

    def dump_stamps(off):
        if not stamps:
            return
        if echo:
            if off == 1:
                return
            nlab[0] += 1
            a("s_memtime s[100:101]")
            a("s_waitcnt lgkmcnt(0)")
            a(f"s_sub_u32 s50, s{S_STAMP+2*echo_b}, s{S_STAMP+2*echo_a}")
            a("s_min_u32 s50, s50, 200000")
            a(f"L_echo{nlab[0]}:")
            a("s_memtime s[52:53]")
            a("s_waitcnt lgkmcnt(0)")
            a("s_sub_u32 s51, s52, s100")
            a("s_cmp_lt_u32 s51, s50")
            a(f"s_cbranch_scc1 L_echo{nlab[0]}")
            return
        a("s_memrealtime s[100:101]")
        a("s_waitcnt lgkmcnt(0)")
        a(f"s_add_u32 s50, s14, {STAMP_OFF}")
        a("s_addc_u32 s51, s15, 0")
        srd(a, S_ST, "s50", "s51", 1 << 20)
        a(f"s_lshl_b32 s50, s{S_L}, 10")
        a(f"s_lshl_b32 s51, s{S_WAVE}, 7")
        a("s_add_u32 s50, s50, s51")
        a("s_mov_b64 exec, 1")
        a("v_mov_b32 v1, s50")
        for i in range(nst[0]):
            a(f"v_mov_b32 v2, s{S_STAMP+2*i}")
            a(f"buffer_store_dword v2, v1, s[{S_ST}:{S_ST+3}], 0 offen offset:{4*i}")
        a("v_mov_b32 v2, s98")
        a(f"buffer_store_dword v2, v1, s[{S_ST}:{S_ST+3}], 0 offen offset:64")
        a("v_mov_b32 v2, s100")
        a(f"buffer_store_dword v2, v1, s[{S_ST}:{S_ST+3}], 0 offen offset:68")
        a("v_mov_b32 v2, s63")
        a(f"buffer_store_dword v2, v1, s[{S_ST}:{S_ST+3}], 0 offen offset:72")

    a(HEADER.rstrip())
    a(f"; @launch grid=(252,1,1) block=(512,1,1) lds={LDS_BYTES}")
    a('.amdgcn_target "amdgcn-amd-amdhsa--gfx950"')
    a(".text")
    a(f".globl {KNAME}")
    a(".p2align 12" if align else ".p2align 8")
    a(f".type {KNAME},@function")
    a(f"{KNAME}:")
    if stamps:
        a("s_memrealtime s[98:99]")
        a("s_mov_b32 s63, 0")
    stamp()
    a("s_cmp_ge_u32 s2, 252")
    a("s_cbranch_scc1 L_end")
    a("s_load_dwordx4 s[4:7], s[0:1], 0")
    a("s_load_dwordx4 s[8:11], s[0:1], 16")
    a("s_load_dwordx4 s[12:15], s[0:1], 32")
    a("v_lshrrev_b32 v1, 6, v0")
    a("v_and_b32 v0, 63, v0")
    a(f"v_readfirstlane_b32 s{S_WAVE}, v1")
    a("s_and_b32 s50, s2, 7")
    a("s_lshr_b32 s51, s2, 3")
    a("s_lshl_b32 s52, s50, 5")
    a("s_add_u32 s51, s51, s52")
    a("s_sub_u32 s52, s50, 4")
    a("s_cmp_gt_u32 s50, 4")
    a("s_cselect_b32 s52, s52, 0")
    a(f"s_sub_u32 s{S_L}, s51, s52")
    a(f"s_mul_i32 s{S_G}, s{S_L}, 7282")
    a(f"s_lshr_b32 s{S_G}, s{S_G}, 16")
    a(f"s_mul_i32 s50, s{S_G}, 9")
    a(f"s_sub_u32 s{S_S}, s{S_L}, s50")
    a(f"s_cmp_ge_u32 s{S_G}, 14")
    a(f"s_cselect_b32 s{S_B}, 1, 0")
    a(f"s_cselect_b32 s50, 14, 0")
    a(f"s_sub_u32 s50, s{S_G}, s50")
    a(f"s_mul_i32 s{S_T0}, s50, 288")
    a(f"s_cmp_lt_u32 s{S_WAVE}, 4")
    a("s_cbranch_scc1 L_C")

    S_HW = 53
    a(f"s_sub_u32 s{S_HW}, s{S_WAVE}, 4")
    a(f"v_lshl_add_u32 v1, v0, 2, s{S_HW}")
    a("v_mul_u32_u24 v2, 4370, v1")
    a("v_lshrrev_b32 v2, 16, v2")
    a("v_mul_u32_u24 v3, 15, v2")
    a("v_sub_u32 v3, v1, v3")
    a(f"v_add_u32 v2, s{S_G}, v2" if rot else "s_nop 0")
    a("v_and_b32 v2, 3, v2")
    a(f"v_mul_u32_u24 v3, {WTAP}, v3")
    a(f"v_mul_u32_u24 v2, {32*WROW}, v2")
    a("v_add_u32 v3, v3, v2")
    a("v_subrev_u32 v4, 60, v1")
    a(f"v_mul_u32_u24 v4, {2*WTAP}, v4")
    a(f"v_add_u32 v4, {128*WROW}, v4")
    a("v_cmp_gt_u32 vcc, 60, v1")
    VW0, VW1, VW2, VW3, VXB, VT, VL16, VL8 = 10, 11, 12, 13, 14, 15, 16, 17
    a("v_lshrrev_b32 v5, 2, v0")
    a(f"v_mul_u32_u24 v5, {WROW}, v5")
    a("v_cndmask_b32 v3, v4, v3, vcc")
    a("v_lshrrev_b32 v6, 5, v0")
    a("v_lshlrev_b32 v6, 1, v6")
    a("v_and_b32 v7, 3, v0")
    a("v_xor_b32 v6, v6, v7")
    a("v_lshl_add_u32 v5, v6, 4, v5")
    a(f"s_lshl_b32 s50, s{S_S}, 6")
    a(f"v_add_u32 v{VW0}, s50, v5")
    for n in range(17):
        a(f"v_readlane_b32 s{S_TAB+n}, v3, {n}")
    a(f"v_add_u32 v{VW1}, {16*WROW-1024}, v{VW0}")
    a(f"v_add_u32 v{VW2}, {WTAP-1024}, v{VW0}")
    a(f"s_cmp_eq_u32 s{S_HW}, 3")
    a("s_cselect_b32 s50, 0x80000000, 0")
    a(f"v_or_b32 v{VW3}, s50, v{VW2}")
    a(f"v_lshlrev_b32 v{VL16}, 4, v0")
    a(f"v_lshlrev_b32 v{VL8}, 3, v0")
    a(f"s_mul_i32 s50, s{S_T0}, {ROWB}")
    a(f"s_sub_u32 s50, s50, {30*ROWB}")
    a(f"v_add_u32 v{VXB}, s50, v{VL16}")
    S_XM, S_WB, S_CNT = 54, 55, 56
    a(f"s_mul_i32 s50, s{S_S}, 5")
    a("s_lshr_b32 s50, s50, 1")
    a("s_lshl_b32 s50, s50, 12")
    a(f"s_lshl_b32 s51, s{S_HW}, 10")
    a(f"s_add_u32 s{S_XM}, s50, s51")
    a(f"s_lshl_b32 s51, s{S_HW}, 11")
    a(f"s_add_u32 s{S_WB}, s51, {WBASE}")
    a(f"s_mul_i32 s50, s{S_B}, {XB}")
    a(f"s_mov_b32 m0, s{S_WB}")
    a("s_waitcnt lgkmcnt(0)")
    srd(a, S_W, "s6", "s7", 15 * WTAP)
    vm = Q()

    def wdma(n, setm0=True):
        sig = 4 * n
        if setm0:
            a(f"s_add_u32 m0, s{S_WB}, {(sig % NSLOT) * 2048}")
            a("s_nop 0")
        v1 = VW1 if n < 15 else (VW2 if n == 15 else VW3)
        a(f"buffer_load_dwordx4 v{VW0}, s[{S_W}:{S_W+3}], s{S_TAB+n} offen lds")
        a(f"buffer_load_dwordx4 v{v1}, s[{S_W}:{S_W+3}], s{S_TAB+n} offen offset:1024 lds")
        vm.add(f"W{n}"); vm.add(f"W{n}")

    wdma(0, setm0=False)
    a("s_add_u32 s4, s4, s50")
    a("s_addc_u32 s5, s5, 0")
    srd(a, S_X, "s4", "s5", XB)
    a(f"s_mov_b32 m0, s{S_XM}")
    a(f"s_mov_b32 s{S_CNT}, 0")
    a("L_xloop:")
    a(f"v_add_u32 v{VT}, m0, v{VXB}")
    a(f"s_add_u32 s{S_CNT}, s{S_CNT}, 1")
    a(f"buffer_load_dwordx4 v{VT}, s[{S_X}:{S_X+3}], 0 offen lds")
    a("s_add_u32 s51, m0, 4096")
    a(f"s_cmp_ge_u32 s51, {XEND}")
    a(f"s_cselect_b32 s52, {XEND}, 0")
    a("s_sub_u32 m0, s51, s52")
    a(f"s_cmp_lt_u32 s{S_CNT}, {NXI}")
    a("s_cbranch_scc1 L_xloop")
    for _ in range(NXI):
        vm.add("X")
    for n in range(1, 8):
        wdma(n)
    stamp()
    a(f"s_mul_i32 s51, s{S_G}, {9*INBOX}")
    a("s_add_u32 s60, s14, s51")
    a("s_addc_u32 s61, s15, 0")
    srd(a, S_WS, "s60", "s61", 9 * INBOX)
    srd(a, S_DBG, "s12", "s13", 256)
    srd(a, S_WO, "s8", "s9", 144 * ROWB)
    a("s_add_u32 s10, s10, s50")
    a("s_addc_u32 s11, s11, 0")
    srd(a, S_OUT, "s10", "s11", XB)
    S_IB = 57
    a(f"s_mul_i32 s{S_IB}, s{S_S}, {INBOX}")
    a(f"s_mul_i32 s51, s{S_HW}, 4608")
    a(f"s_add_u32 s58, s{S_IB}, s51")
    a("s_add_u32 s59, s58, 4096")
    for r in range(20, 24):
        a(f"v_mov_b32 v{r}, -1")

    def hbar(sg):
        gi = GROUPS.index(sg)
        end = GROUPS[gi + 1] if gi + 1 < len(GROUPS) else NSTEP
        tags = {f"W{n}" for n in range(sg // 4, end // 4)}
        if sg == 0:
            tags.add("X")
        if sg == 16:
            tags.add("CLR")
        a(f"s_waitcnt vmcnt({vm.need(tags)})")
        a("s_barrier")

    issued = 8
    for sg in GROUPS:
        if sg == 48:
            a(f"s_cmp_lg_u32 s{S_HW}, 0")
            a("s_cbranch_scc1 L_nopoll")
            a(f"s_mov_b32 s{S_CNT}, 0")
            a(f"s_lshl_b32 s51, s{S_G}, 2")
            a("v_mov_b32 v1, s51")
            a("L_rdy:")
            a(f"buffer_load_dword v2, v1, s[{S_DBG}:{S_DBG+3}], 0 offen sc1")
            a(f"s_add_u32 s{S_CNT}, s{S_CNT}, 1")
            a("s_waitcnt vmcnt(0)")
            a("v_readfirstlane_b32 s51, v2")
            a(f"s_cmp_gt_u32 s{S_CNT}, {POLL_MAX}")
            a("s_cbranch_scc1 L_nopoll")
            a("s_cmp_lt_u32 s51, 9")
            a("s_cbranch_scc1 L_rdy")
            a("L_nopoll:")
        hbar(sg)
        if sg == 0:
            stamp()
            for j in range(4):
                a(f"buffer_store_dwordx4 v[20:23], v{VL16}, s[{S_WS}:{S_WS+3}], s58 offen offset:{1024*j} sc1")
                vm.add("CLR")
            a(f"buffer_store_dwordx2 v[20:21], v{VL8}, s[{S_WS}:{S_WS+3}], s59 offen sc1")
            vm.add("CLR")
        if sg == 16:
            a(f"s_cmp_lg_u32 s{S_HW}, 0")
            a("s_cbranch_scc1 L_noatom")
            a(f"s_lshl_b32 s51, s{S_G}, 2")
            a("v_mov_b32 v1, s51")
            a("v_mov_b32 v2, 1")
            a("s_mov_b64 exec, 1")
            a(f"buffer_atomic_add v2, v1, s[{S_DBG}:{S_DBG+3}], 0 offen sc1")
            a("s_mov_b64 exec, -1")
            a("L_noatom:")
        while issued < 17 and issued <= (sg + 27) // 4:
            wdma(issued)
            issued += 1
        if sg == 60:
            a(f"s_lshl_b32 s51, s{S_HW}, 10")
            a(f"v_add_u32 v{VT}, s51, v{VL16}")
            a(f"s_add_u32 m0, s51, {WOBASE}")
            for n in range(11):
                a(f"buffer_load_dwordx4 v{VT}, s[{S_WO}:{S_WO+3}], 0 offen lds")
                vm.add("WO")
                if n < 10:
                    a("s_add_u32 m0, m0, 4096")
                    a(f"v_add_u32 v{VT}, 4096, v{VT}")
    stamp()
    VQ, VR, VA, VA2, VZ16, VZ8, VO, VO2 = 2, 3, 4, 5, 6, 7, 8, 9
    S_TAU, S_AB = 58, 59
    a(f"s_lshr_b32 s{S_TAU}, s{S_HW}, 1")
    a(f"s_and_b32 s{S_AB}, s{S_HW}, 1")
    a(f"v_lshrrev_b32 v{VQ}, 4, v0")
    a(f"v_and_b32 v{VR}, 15, v0")
    a(f"v_lshrrev_b32 v1, 2, v{VR}")
    a(f"v_lshl_add_u32 v1, v{VQ}, 2, v1")
    a(f"v_mul_u32_u24 v1, {ROWB}, v1")
    a(f"v_add_u32 v1, {WOBASE}, v1")
    a(f"v_and_b32 v18, 3, v0")
    a(f"v_lshl_add_u32 v{VA}, v18, 4, v1")
    a(f"v_lshl_add_u32 v{VA2}, v18, 3, v1")
    a(f"s_mul_i32 s51, s{S_TAU}, 5120")
    a(f"v_add_u32 v{VZ16}, s51, v{VL16}")
    a(f"v_add_u32 v{VZ8}, s51, v{VL8}")
    a(f"s_mul_i32 s51, s{S_TAU}, 144")
    a(f"s_add_u32 s51, s51, s{S_T0}")
    a(f"s_add_u32 s51, s51, s{S_S}")
    a(f"v_mul_u32_u24 v1, 9, v{VR}")
    a("v_add_u32 v1, s51, v1")
    a(f"v_mul_u32_u24 v1, {ROWB}, v1")
    a(f"v_lshl_add_u32 v{VO}, v{VQ}, 4, v1")
    a(f"v_lshl_add_u32 v{VO2}, v{VQ}, 3, v1")
    a(f"s_lshl_b32 s51, s{S_TAU}, 10")
    a(f"s_add_u32 s51, s51, s{S_IB}")
    for sp in range(9):
        a(f"s_add_u32 s{64+sp}, s51, {2048*sp}")
    a("s_mov_b32 s62, 0xffff0000")
    a("s_waitcnt vmcnt(0)")
    a("s_barrier")
    stamp()
    a(f"s_cmp_eq_u32 s{S_AB}, 1")
    a("s_cbranch_scc1 L_Hb")

    WOF = 100
    PB = 24
    ZB = 48
    TB = 68
    OB = 76
    save = nst[0]
    for ab in (0, 1):
        nst[0] = save
        sfx = "ab"[ab]
        if ab:
            a("L_Hb:")
        tiles = [(0, 0), (0, 1), (32, 0), (32, 1), (128, None)] if ab == 0 else [(64, 0), (64, 1), (96, 0), (96, 1)]
        for ti, (cb, e) in enumerate(tiles):
            base = VA if e is not None else VA2
            for kap in range(5):
                for rho in range(2 if kap < 4 else 1):
                    off = kap * 9216 + rho * 4608 + cb * 2 + (e or 0) * 8
                    d = WOF + 18 * ti + 4 * kap + 2 * rho
                    a(f"ds_read_b64_tr_b16 {vr(d,2)}, v{base} offset:{off}")
            if ti % 1 == 0:
                a("s_waitcnt lgkmcnt(6)")
        for ti in range(len(tiles)):
            for j in range(4):
                a(f"v_mov_b32 v{OB+4*ti+j}, 0")
        pieces = [0, 1, 4, 5, 6] if ab == 0 else [2, 3, 4, 6, 7, 8]
        preg = {sp: PB + 4 * i for i, sp in enumerate(pieces)}
        a(f"s_mov_b32 s{S_CNT}, 0")
        if poll_delay:
            a(f"s_sleep {poll_delay}")
        a(f"L_poll{sfx}:")
        a(f"s_cmp_eq_u32 s{S_S}, 8")
        a(f"s_cbranch_scc1 L_ld8{sfx}")
        for sp in pieces:
            a(f"buffer_load_dwordx4 {vr(preg[sp])}, v{VL16}, s[{S_WS}:{S_WS+3}], s{64+sp} offen sc1")
        a(f"s_branch L_ldd{sfx}")
        a(f"L_ld8{sfx}:")
        for sp in pieces:
            a(f"buffer_load_dwordx2 {vr(preg[sp],2)}, v{VL8}, s[{S_WS}:{S_WS+3}], s{64+sp} offen sc1")
            a(f"buffer_load_dwordx2 {vr(preg[sp]+2,2)}, v{VL8}, s[{S_WS}:{S_WS+3}], s{64+sp} offen offset:512 sc1")
        a(f"L_ldd{sfx}:")
        a(f"s_add_u32 s{S_CNT}, s{S_CNT}, 1")
        a("s_waitcnt vmcnt(0)")
        chk = [preg[sp] + d for sp in pieces for d in (0, 2)]
        a(f"v_max_u32 v{TB}, v{chk[0]}, v{chk[1]}")
        for i in range(2, len(chk), 2):
            a(f"v_max3_u32 v{TB}, v{TB}, v{chk[i]}, v{chk[i+1]}")
        a(f"v_cmp_eq_u32 vcc, -1, v{TB}")
        a(f"s_cmp_gt_u32 s{S_CNT}, {POLL_MAX}")
        a(f"s_cbranch_scc1 L_got{sfx}")
        a(f"s_cbranch_vccnz L_poll{sfx}")
        a(f"L_got{sfx}:")
        if stamps:
            a(f"s_mov_b32 s63, s{S_CNT}")
        stamp()
        a("s_waitcnt lgkmcnt(0)")

        def blockreg(beta):
            return preg[beta >> 1] + 2 * (beta & 1)

        def product(kap):
            for half in range(2 if kap < 4 else 1):
                zb = 2 * kap + half
                for d in range(2):
                    f = blockreg(zb) + d
                    g = blockreg(zb + 9) + d
                    z = ZB + 4 * kap + 2 * half + d
                    t = TB + 4 * (d & 1)
                    a(f"v_lshlrev_b32 v{t}, 16, v{f}")
                    a(f"v_lshlrev_b32 v{t+1}, 16, v{g}")
                    a(f"v_and_b32 v{t+2}, s62, v{f}")
                    a(f"v_and_b32 v{t+3}, s62, v{g}")
                    a(f"v_mul_f32 v{t}, v{t}, v{t+1}")
                    a(f"v_mul_f32 v{t+2}, v{t+2}, v{t+3}")
                    a(f"v_cvt_pk_bf16_f32 v{z}, v{t}, v{t+2}")

        def fmfma(kap):
            for ti in range(len(tiles)):
                o = vr(OB + 4 * ti)
                if kap < 4:
                    a(f"v_mfma_f32_16x16x32_bf16 {o}, {vr(WOF+18*ti+4*kap)}, {vr(ZB+4*kap)}, {o}")
                else:
                    a(f"v_mfma_f32_16x16x16_bf16 {o}, {vr(WOF+18*ti+16,2)}, {vr(ZB+16,2)}, {o}")

        own = [0, 1] if ab == 0 else [2, 3, 4]
        oth = [2, 3, 4] if ab == 0 else [0, 1]
        for kap in own:
            product(kap)
            if kap < 4:
                a(f"ds_write_b128 v{VZ16}, {vr(ZB+4*kap)} offset:{1024*kap}")
            else:
                a(f"ds_write_b64 v{VZ8}, {vr(ZB+16,2)} offset:4096")
        a("s_waitcnt lgkmcnt(0)")
        a("s_barrier")
        for kap in oth:
            if kap < 4:
                a(f"ds_read_b128 {vr(ZB+4*kap)}, v{VZ16} offset:{1024*kap}")
            else:
                a(f"ds_read_b64 {vr(ZB+16,2)}, v{VZ8} offset:4096")
        seq = [k for k in own if k < 4] + [k for k in oth if k < 4] + [4]
        waited = False
        for kap in seq:
            if kap in oth and not waited:
                a("s_waitcnt lgkmcnt(0)")
                waited = True
            if kap == 4:
                a("s_nop 3")
            fmfma(kap)
        a("s_nop 7")
        for pi in range(2):
            d = PB + 4 * pi
            for e in range(2):
                o = OB + 4 * (2 * pi + e)
                a(f"v_cvt_pk_bf16_f32 v{d+2*e}, v{o}, v{o+1}")
                a(f"v_cvt_pk_bf16_f32 v{d+2*e+1}, v{o+2}, v{o+3}")
            a(f"buffer_store_dwordx4 {vr(d)}, v{VO}, s[{S_OUT}:{S_OUT+3}], 0 offen offset:{tiles[2*pi][0]*2}{OST}")
        if ab == 0:
            o = OB + 16
            a(f"v_cvt_pk_bf16_f32 v{PB+8}, v{o}, v{o+1}")
            a(f"v_cvt_pk_bf16_f32 v{PB+9}, v{o+2}, v{o+3}")
            a(f"buffer_store_dwordx2 {vr(PB+8,2)}, v{VO2}, s[{S_OUT}:{S_OUT+3}], 0 offen offset:256{OST}")
        stamp()
        if stamps:
            a("s_waitcnt vmcnt(0)")
            stamp()
        dump_stamps(0)
        a("s_endpgm")

    nst[0] = 1
    a("L_C:")
    if prio:
        a(f"s_setprio {prio}")
    S_P, S_PAR = 53, 54
    ACC = 4
    WF = 40
    XW = 64
    XE = 100
    AW, AX, AGW, AGX, AWF = 112, 116, 120, 121, 122
    VC3, VL16c, VL8c = 124, 126, 127
    TT = 128
    a(f"s_lshr_b32 s{S_P}, s{S_WAVE}, 1")
    a(f"s_and_b32 s{S_PAR}, s{S_WAVE}, 1")
    a("v_and_b32 v1, 15, v0")
    a("v_lshrrev_b32 v2, 4, v0")
    a(f"v_mul_u32_u24 v3, {9*ROWB}, v1")
    a(f"s_mul_i32 s50, s{S_P}, {144*ROWB}")
    a(f"s_mul_i32 s51, s{S_PAR}, {ROWB}")
    a("v_add_u32 v3, s50, v3")
    a(f"v_lshl_add_u32 v{TT}, v2, 4, v3")
    for k in range(4):
        a(f"s_add_u32 s52, s{S_G}, {k}" if rot else f"s_mov_b32 s52, {k}")
        a("s_and_b32 s52, s52, 3")
        a("s_lshl_b32 s52, s52, 6")
        a(f"v_add_u32 v{AX+k}, s52, v{TT}")
        a(f"v_add_u32 v{AW+k}, s51, v{AX+k}")
    a(f"v_and_b32 v{TT}, 1, v2")
    a(f"v_lshl_add_u32 v3, v{TT}, 4, v3")
    a(f"v_lshrrev_b32 v{TT+1}, 1, v2")
    a(f"v_mul_u32_u24 v{TT+1}, {2*ROWB}, v{TT+1}")
    a(f"v_sub_u32 v3, v3, v{TT+1}")
    a(f"v_add_u32 v{AGX}, {256+2*ROWB}, v3")
    a(f"v_add_u32 v{AGW}, s51, v{AGX}")
    a(f"v_lshrrev_b32 v3, 2, v1")
    a("v_lshl_add_u32 v3, v2, 3, v3")
    a("v_lshlrev_b32 v3, 6, v3")
    a(f"v_and_b32 v{TT+1}, 3, v0")
    a(f"v_lshl_add_u32 v3, v{TT+1}, 3, v3")
    a(f"v_add_u32 v3, {WBASE}, v3")
    a(f"v_xor_b32 v{TT}, s{S_PAR}, v{TT}")
    a(f"v_lshl_add_u32 v{AWF}, v{TT}, 5, v3")
    a(f"v_xor_b32 v{AWF+1}, 32, v{AWF}")
    for r in range(36):
        a(f"v_mov_b32 v{ACC+r}, 0")
    S_C1, S_C2 = 56, 58
    for phi in range(2):
        a(f"s_xor_b32 s50, s{S_PAR}, {phi}")
        a(f"s_lshl_b32 s51, s{S_S}, 1")
        a("s_add_u32 s50, s50, s51")
        a("s_cmp_lt_u32 s50, 9")
        a(f"s_mov_b32 s51, {f2u(-LOG2E):#x}")
        a(f"s_cselect_b32 s{S_C1+phi}, {f2u(-2*LOG2E):#x}, s51")
        a(f"s_cselect_b32 s{S_C2+phi}, 2.0, 1.0")
        a(f"s_cselect_b32 s50, -1.0, 0")
        a(f"v_mov_b32 v{VC3+phi}, s50")
    a(f"v_lshlrev_b32 v{VL16c}, 4, v0")
    a(f"v_lshlrev_b32 v{VL8c}, 3, v0")
    S_PUB, S_PUBE = 60, 61
    a(f"s_lshl_b32 s50, s{S_S}, 11")
    a(f"s_lshl_b32 s51, s{S_P}, 10")
    a("s_add_u32 s50, s50, s51")
    a(f"s_mul_i32 s51, s{S_PAR}, {INBOX}")
    a(f"s_add_u32 s{S_PUB}, s50, s51")
    a(f"s_lshl_b32 s51, s{S_PAR}, 9")
    a("s_add_u32 s50, s50, s51")
    a(f"s_add_u32 s{S_PUBE}, s50, {8*INBOX}")
    a("s_waitcnt lgkmcnt(0)")
    a(f"s_mul_i32 s51, s{S_G}, {9*INBOX}")
    a("s_add_u32 s50, s14, s51")
    a("s_addc_u32 s51, s15, 0")
    srd(a, S_WS, "s50", "s51", 9 * INBOX)
    stamp()
    if stamps:
        a("s_waitcnt lgkmcnt(0)")

    def step_info(s):
        return (s // 15, s % 15) if s < 60 else (4, s - 60)

    def win_needed(s):
        k, i = step_info(s)
        first = i if k < 4 else 2 * i
        return [(k, first + 3 - jj) for jj in range(4)]

    def wreg(fr):
        return XW + 4 * ((18 * fr[0] + fr[1]) % 9)

    first_use, last_use = {}, {}
    for s in range(NSTEP):
        for fr in win_needed(s):
            first_use.setdefault(fr, s)
            last_use[fr] = s
    load_at = {}
    for fr, fu in first_use.items():
        k, n = fr
        at = fu - 2
        if k >= 1 and n < 3:
            at = 15 * k - 5 + n
        N = 18 * k + n - 9
        if N >= 0:
            prev = (N // 18, N % 18)
            at = max(at, last_use[prev] + 1)
        assert at < fu
        load_at[fr] = at

    def rd_w(s):
        out = []
        for phi in range(2):
            for rho in range(2):
                d = WF + 8 * (s % 3) + 4 * phi + 2 * rho
                out.append((f"ds_read_b64_tr_b16 {vr(d,2)}, v{AWF+phi} offset:{(s % NSLOT)*2048 + 256*rho}", f"w{s}"))
        return out

    def rd_e(s):
        k, i = step_info(s)
        if k < 4:
            return (f"ds_read_b128 {vr(XE+4*(s%3))}, v{AX+k} offset:{(38-2*i)*ROWB}", f"e{s}")
        return (f"ds_read_b128 {vr(XE+4*(s%3))}, v{AGX} offset:{(36-4*i)*ROWB}", f"e{s}")

    def rd_x(fr):
        k, n = fr
        if k < 4:
            return (f"ds_read_b128 {vr(wreg(fr))}, v{AW+k} offset:{(36-2*n)*ROWB}", f"x{fr}")
        return (f"ds_read_b128 {vr(wreg(fr))}, v{AGW} offset:{(34-2*n)*ROWB}", f"x{fr}")

    def reads_in(s):
        out = []
        xs = sorted([fr for fr, at in load_at.items() if at == s], key=lambda fr: first_use[fr])
        urgent = [fr for fr in xs if first_use[fr] == s + 1]
        out += [rd_x(fr) for fr in urgent]
        if s + 2 < NSTEP:
            out += rd_w(s + 2)
            out.append(rd_e(s + 2))
        out += [rd_x(fr) for fr in xs if fr not in urgent]
        return out

    lg = Q()
    a("s_barrier")
    stamp()
    if stamps:
        a("s_waitcnt lgkmcnt(0)")
    pro = rd_w(0) + [rd_x(fr) for fr in sorted(load_at) if load_at[fr] == -2] + [rd_e(0)]
    pro += rd_w(1) + [rd_e(1)] + [rd_x(fr) for fr in sorted(load_at) if load_at[fr] == -1]
    for ins, tag in pro:
        a(ins)
        lg.add(tag)
    for s in range(NSTEP):
        wn = win_needed(s)
        tags = {f"w{s}", f"e{s}"} | {f"x{fr}" for fr in wn}
        n = lg.need(tags)
        assert n <= 15
        a(f"s_waitcnt lgkmcnt({n})")
        rds = reads_in(s)
        mf = []
        for jj in (3, 2, 1, 0):
            for phi in range(2):
                acc = vr(ACC + 8 * jj + 4 * phi)
                mf.append(f"v_mfma_f32_16x16x32_bf16 {acc}, {vr(WF+8*(s%3)+4*phi)}, {vr(wreg(wn[jj]))}, {acc}")
        acc = vr(ACC + 32)
        mf.append(f"v_mfma_f32_16x16x32_bf16 {acc}, {vr(WF+8*(s%3))}, {vr(XE+4*(s%3))}, {acc}")
        bar = (s + 2) in GROUPS
        for i, m in enumerate(mf):
            a(m)
            if i == 0 and bar:
                a("s_barrier")
            if rds:
                ins, tag = rds.pop(0)
                a(ins)
                lg.add(tag)
        assert not rds
    stamp()

    def act(src, phi, dst, t):
        for j in range(4):
            a(f"v_mul_f32 v{t+j}, s{S_C1+phi}, v{src+j}")
        for j in range(4):
            a(f"v_exp_f32 v{t+j}, v{t+j}")
        for j in range(4):
            a(f"v_add_f32 v{t+j}, 1.0, v{t+j}")
        for j in range(4):
            a(f"v_rcp_f32 v{t+j}, v{t+j}")
        for j in range(4):
            a(f"v_fma_f32 v{t+j}, v{t+j}, s{S_C2+phi}, v{VC3+phi}")
        a(f"v_cvt_pk_bf16_f32 v{dst}, v{t}, v{t+1}")
        a(f"v_cvt_pk_bf16_f32 v{dst+1}, v{t+2}, v{t+3}")

    for jj in (3, 2, 1, 0):
        d = WF + 4 * jj
        act(ACC + 8 * jj, 0, d, TT)
        act(ACC + 8 * jj + 4, 1, d + 2, TT + 4)
        a(f"s_cmp_eq_u32 s{S_PAR}, 0")
        a(f"s_cbranch_scc1 L_nosw{jj}")
        a(f"v_swap_b32 v{d}, v{d+2}")
        a(f"v_swap_b32 v{d+1}, v{d+3}")
        a(f"L_nosw{jj}:")
        a(f"s_add_u32 s50, s{S_PUB}, {2*INBOX*jj}")
        a(f"buffer_store_dwordx4 {vr(d)}, v{VL16c}, s[{S_WS}:{S_WS+3}], s50 offen sc1")
    act(ACC + 32, 0, WF + 16, TT)
    a(f"buffer_store_dwordx2 {vr(WF+16,2)}, v{VL8c}, s[{S_WS}:{S_WS+3}], s{S_PUBE} offen sc1")
    stamp()
    if stamps:
        a("s_waitcnt vmcnt(0)")
        stamp()
    dump_stamps(1)
    a("L_end:")
    a("s_endpgm")
    a('.section .rodata,"a"')
    a(".p2align 6")
    a(f".amdhsa_kernel {KNAME}")
    a("  .amdhsa_next_free_vgpr 256")
    a("  .amdhsa_next_free_sgpr 102")
    a("  .amdhsa_accum_offset 256")
    a("  .amdhsa_group_segment_fixed_size 0")
    a("  .amdhsa_kernarg_size 48")
    a("  .amdhsa_user_sgpr_count 2")
    a("  .amdhsa_user_sgpr_kernarg_segment_ptr 1")
    a("  .amdhsa_system_sgpr_workgroup_id_x 1")
    a(".end_amdhsa_kernel")
    return a.text()


if __name__ == "__main__":
    out = sys.argv[1]
    kw = {}
    for x in sys.argv[2:]:
        k, v = x.split("=")
        kw[k] = int(v)
    open(out, "w").write(gen(**kw))
```
